```python
import torch

def _softmax(x, axis=-1):
    return torch.softmax(x, dim=axis)
def _gelu(x):
    return torch.nn.functional.gelu(x, approximate="tanh")
def _silu(x):
    return torch.nn.functional.silu(x)
def _sigmoid(x):
    return torch.sigmoid(x)
def _layernorm(x, axis=-1, eps=1e-5):
    m = x.mean(dim=axis, keepdim=True)
    v = x.var(dim=axis, keepdim=True, unbiased=False)
    return (x - m) / torch.sqrt(v + eps)
def _scatter_add(tgt, idx, src, axis=0):
    return tgt.clone().index_add_(axis, idx, src)
def _segment_sum(src, seg, n):
    out = torch.zeros((n,) + src.shape[1:], dtype=src.dtype)
    return out.index_add_(0, seg, src)
def _pad(x, pw):
    flat = tuple(v for pair in reversed(pw) for v in pair)
    return torch.nn.functional.pad(x, flat)

kernel_name = 'recurrent_scan__spectral_gfnet__swiglu_ffn__prompt'

def setup_inputs():

    _w = (lambda a: (lambda t: t.to(torch.bfloat16) if t.is_floating_point() else t)(torch.as_tensor(a)))
    def _A_setup():
        B, S, D = 1, 2048, 640
        Df = D // 2 + 1
        return {
            "x": _w((lambda *s: torch.randn(*s, dtype=torch.bfloat16) * 0.05)(B, S, D)),
            "w_r": _w((lambda *s: torch.randn(*s, dtype=torch.bfloat16) * 0.1)(S, Df) * 0.02),
            "w_i": _w((lambda *s: torch.randn(*s, dtype=torch.bfloat16) * 0.1)(S, Df) * 0.02),
        }
    _A_in = _A_setup()

    def _B_setup():
        B, S, D, F = 1, 2048, 640, 1536
        return {
            "x": _w((lambda *s: torch.randn(*s, dtype=torch.bfloat16) * 0.05)(B, S, D)),
            "w_gate": _w((lambda *s: torch.randn(*s, dtype=torch.bfloat16) * 0.05)(D, F)),
            "w_up": _w((lambda *s: torch.randn(*s, dtype=torch.bfloat16) * 0.05)(D, F)),
            "w_down": _w((lambda *s: torch.randn(*s, dtype=torch.bfloat16) * 0.05)(F, D)),
        }
    _B_in = _B_setup()

    return {
        "A_x": _A_in["x"],
        "A_w_r": _A_in["w_r"],
        "A_w_i": _A_in["w_i"],
        "B_x": _B_in["x"],
        "B_w_gate": _B_in["w_gate"],
        "B_w_up": _B_in["w_up"],
        "B_w_down": _B_in["w_down"],
    }

def reference(A_x, A_w_r, A_w_i, B_x, B_w_gate, B_w_up, B_w_down):
    def _A_ref(x, w_r, w_i):
        B, S, D = x.shape
        X = (lambda x, axes=(-2,-1): torch.fft.rfft2(x.float(), dim=axes))(x, axes=(-2, -1))
        W = w_r + 1j * w_i
        X = X * W
        y = (lambda x, s, axes=(-2,-1): torch.fft.irfft2(x, s=s, dim=axes).to(torch.bfloat16))(X, (S, D), axes=(-2, -1))
        return y

    def _B_ref(x, w_gate, w_up, w_down):
        g = _silu(x @ w_gate)
        u = x @ w_up
        return (g * u) @ w_down

    x = A_x
    xn = _layernorm(x, axis=-1)
    s = _A_ref(xn, A_w_r, A_w_i)
    g = _silu(_B_ref(xn, B_w_gate, B_w_up, B_w_down))
    return x + s * g
```

```python
from prog import *
WS_FLAG = 0x0
WS_STAT = 0x10000
WS_STAMP = 0x40000
WS_T = 0x100000
WS_V = 0x400000
WS_H = 0x700000
WS_SIZE = 0xE00000
XB = 2048*1280; WGB = 640*3072; WDB = 1536*1280; WFB = 2048*642
S_WAVE = 3
P_X, P_WR, P_WI, P_WG, P_WU, P_WD, P_OUT, P_DBG, P_WS = 4, 6, 8, 12, 14, 16, 18, 20, 22
R_X, R_WS, R_A, R_B, R_C, R_D = 24, 28, 32, 36, 40, 44
S_XCD, S_R = 48, 49
S_T0, S_T1, S_T2, S_T3 = 50, 51, 52, 53
S_FREE = 56
S_STAMP = 96
LOG2E = 1.4426950408889634
import struct
def f2u(x): return struct.unpack('<I', struct.pack('<f', x))[0]
def fl(x): return hex(f2u(x))

def srd(P, r, ptr, nbytes, back=0):
    if back:
        P(f's_sub_u32 s{r}, s{ptr}, {back}'); P(f's_subb_u32 s{r+1}, s{ptr+1}, 0')
    else:
        P(f's_mov_b32 s{r}, s{ptr}'); P(f's_mov_b32 s{r+1}, s{ptr+1}')
    P(f's_mov_b32 s{r+2}, {nbytes+back}'); P(f's_mov_b32 s{r+3}, 0x20000')

def prologue(P, name, nwg=256):
    P(f's_cmp_lt_u32 s2, {nwg}'); P(f's_cbranch_scc1 {name}_go'); P('s_endpgm'); P(f'{name}_go:')
    P('s_load_dwordx16 s[4:19], s[0:1], 0'); P('s_load_dwordx4 s[20:23], s[0:1], 64')
    P('v_lshrrev_b32 v1, 6, v0'); P(f'v_readfirstlane_b32 s{S_WAVE}, v1')
    P('v_and_b32 v0, 63, v0')
    P(f's_and_b32 s{S_XCD}, s2, 7'); P(f's_lshr_b32 s{S_R}, s2, 3')
    P.wait(lg=0)
    srd(P, R_X, P_X, XB); srd(P, R_WS, P_WS, WS_SIZE)

class Stamper:
    def __init__(self, on, vreg): self.on = on; self.v = vreg; self.n = 0; self.names = []
    def __call__(self, P, name):
        if not self.on: return
        P.wait(lg=0)
        P(f's_memrealtime s[{S_STAMP}:{S_STAMP+1}]'); P(f's_memtime s[{S_STAMP-2}:{S_STAMP-1}]'); P.wait(lg=0)
        P(f'v_writelane_b32 v{self.v}, s{S_STAMP}, {self.n}')
        P(f'v_writelane_b32 v{self.v}, s{S_STAMP-2}, {self.n+32}')
        self.names.append(name); self.n += 1
    def flush(self, P, vtmp, base=0):
        if not self.on: return
        P(f's_lshl_b32 s{S_STAMP+2}, s2, 2'); P(f's_add_u32 s{S_STAMP+2}, s{S_STAMP+2}, s{S_WAVE}')
        P(f's_lshl_b32 s{S_STAMP+2}, s{S_STAMP+2}, 8'); P(f's_add_u32 s{S_STAMP+2}, s{S_STAMP+2}, {WS_STAMP+base}')
        P(f'v_lshlrev_b32 v{vtmp}, 2, v0')
        P(f'buffer_store_dword v{self.v}, v{vtmp}, s[{R_WS}:{R_WS+3}], s{S_STAMP+2} offen')
```

```python
from common import *
NX = 4; NW = 4
XRING = 0; WRING = 65536

def silu_mul_ops(acc, k1, k2, tmp, outp):
    ops = []
    for grp in range(2):
        idx = range(4*grp, 4*grp+4)
        t = lambda i: tmp + (i & 3); p = lambda i: tmp + 4 + (i & 3)
        for i in idx: ops.append(f'v_mul_f32 v{t(i)}, v{acc+i}, v{k1}')
        for i in idx: ops.append(f'v_exp_f32 v{t(i)}, v{t(i)}')
        for i in idx: ops.append(f'v_mul_f32 v{p(i)}, v{acc+i}, v{acc+8+i}')
        for i in idx: ops.append(f'v_fma_f32 v{t(i)}, v{t(i)}, v{k2}, v{k2}')
        for i in idx: ops.append(f'v_rcp_f32 v{t(i)}, v{t(i)}')
        for i in idx: ops.append(f'v_mul_f32 v{p(i)}, v{p(i)}, v{t(i)}')
        for j in range(2): ops.append(f'v_cvt_pk_bf16_f32 v{outp+2*grp+j}, v{tmp+4+2*j}, v{tmp+5+2*j}')
    return ops
def cost(op):
    mn = op.split()[0]
    if mn in TRANS or mn.startswith('buffer') or mn.startswith('v_mfma') or mn.startswith('ds_'): return 2
    return 1

def role_g1(P, st, fill_rate=2.5):
    V = Alloc(1, 128); ACC = 128
    sB, sJ, sA = S_FREE, S_FREE+1, S_FREE+2
    sXo, sWo, sHo, sSt, sXl, sWl, sXoB = S_FREE+3, S_FREE+4, S_FREE+5, S_FREE+6, S_FREE+7, S_FREE+8, S_FREE+9
    srd(P, R_A, P_WG, WGB); srd(P, R_B, P_WU, WGB, back=2048)
    P(f's_and_b32 s{S_T0}, s{S_XCD}, 1'); P(f's_lshl_b32 s{S_T0}, s{S_T0}, 2'); P(f's_and_b32 s{S_T1}, s{S_R}, 3'); P(f's_add_u32 s{sB}, s{S_T0}, s{S_T1}')
    P(f's_lshr_b32 s{S_T0}, s{S_XCD}, 1'); P(f's_and_b32 s{sA}, s{S_T0}, 1'); P(f's_mul_i32 s{S_T0}, s{S_T0}, 6'); P(f's_lshr_b32 s{S_T1}, s{S_R}, 2'); P(f's_add_u32 s{sJ}, s{S_T0}, s{S_T1}')
    P(f's_lshl_b32 s{S_T0}, s{sB}, 2'); P(f's_lshl_b32 s{S_T1}, s{sA}, 1'); P(f's_add_u32 s{S_T2}, s{S_T0}, s{S_T1}')
    P(f's_xor_b32 s{S_T3}, s{S_T2}, 2')
    P(f's_lshr_b32 s{S_T0}, s{S_WAVE}, 1'); P(f's_and_b32 s{S_T1}, s{S_WAVE}, 1'); P(f's_lshl_b32 s{S_T1}, s{S_T1}, 10'); P(f's_add_u32 s{S_T0}, s{S_T0}, s{S_T1}')
    P(f's_add_u32 s{sXo}, s{S_T0}, s{S_T2}'); P(f's_mul_i32 s{sXo}, s{sXo}, 1280')
    P(f's_add_u32 s{sXoB}, s{S_T0}, s{S_T3}'); P(f's_mul_i32 s{sXoB}, s{sXoB}, 1280')
    P(f's_lshl_b32 s{sXl}, s{S_WAVE}, 12')
    P(f's_add_u32 s{sWl}, s{sXl}, {WRING}')
    P(f's_mul_i32 s{sWo}, s{S_WAVE}, {16*3072}'); P(f's_lshl_b32 s{S_T0}, s{sJ}, 7'); P(f's_add_u32 s{sWo}, s{sWo}, s{S_T0}')
    P(f's_mul_i32 s{sHo}, s{S_T2}, 192'); P(f's_lshl_b32 s{S_T0}, s{sJ}, 2'); P(f's_add_u32 s{sHo}, s{sHo}, s{S_T0}'); P(f's_add_u32 s{sHo}, s{sHo}, s{S_WAVE}')
    P(f's_lshl_b32 s{sHo}, s{sHo}, 10'); P(f's_add_u32 s{sHo}, s{sHo}, {WS_H}')
    P(f's_lshl_b32 s{sSt}, s{S_T2}, 10'); P(f's_add_u32 s{sSt}, s{sSt}, {WS_STAT}')
    vxd = V(4); vwd = V(4); t0 = V(); t1 = V(); t2 = V()
    P(f'v_lshrrev_b32 v{t0}, 3, v0')
    P(f'v_and_b32 v{t1}, 7, v0')
    P(f'v_lshrrev_b32 v{t2}, 4, v0')
    P(f'v_xor_b32 v{t2}, v{t2}, v{t1}'); P(f'v_lshlrev_b32 v{t2}, 4, v{t2}')
    P(f'v_mul_u32_u24 v{vxd}, 40960, v{t0}'); P(f'v_add_u32 v{vxd}, v{vxd}, v{t2}')
    P(f'v_xor_b32 v{vxd+1}, 64, v{vxd}'); P(f'v_add_u32 v{vxd+1}, {8*40960-1024}, v{vxd+1}')
    P(f'v_add_u32 v{vxd+2}, {16*40960-2048}, v{vxd}'); P(f'v_add_u32 v{vxd+3}, {16*40960-2048}, v{vxd+1}')
    P(f'v_and_b32 v{t2}, 2, v{t0}'); P(f'v_xor_b32 v{t2}, v{t2}, v{t1}'); P(f'v_lshlrev_b32 v{t2}, 4, v{t2}')
    P(f'v_mul_u32_u24 v{vwd}, 3072, v{t0}'); P(f'v_add_u32 v{vwd}, v{vwd}, v{t2}')
    P(f'v_add_u32 v{vwd+1}, {8*3072-1024}, v{vwd}')
    P(f'v_xor_b32 v{vwd+2}, 64, v{vwd}'); P(f'v_xor_b32 v{vwd+3}, 64, v{vwd+1}')
    def dma_x(g):
        ops = [f's_add_u32 m0, s{sXl}, {XRING + (g % NX)*16384}']
        for i in range(4): ops.append((f'buffer_load_dwordx4 v{vxd+i}, s[{R_X}:{R_X+3}], s{sXo} offen offset:{1024*i} lds', f'x{g}'))
        ops.append(f's_mov_b32 s{sXo}, s{sXoB}' if g == 9 else f's_add_u32 s{sXo}, s{sXo}, 128')
        return ops
    def dma_w(g):
        ops = [f's_add_u32 m0, s{sWl}, {(g % NW)*16384}']
        for i in range(4):
            R = R_A if i < 2 else R_B
            ops.append((f'buffer_load_dwordx4 v{vwd+i}, s[{R}:{R+3}], s{sWo} offen offset:{1024*i} lds', f'w{g}'))
        ops.append(f's_add_u32 s{sWo}, s{sWo}, {64*3072}')
        return ops
    def emit(op):
        if isinstance(op, tuple): P(op[0], tag=op[1])
        else: P(op)
    for g in range(max(NX, NW)):
        for op in (dma_w(g) if g < NW else []) + (dma_x(g) if g < NX else []): emit(op)
    st(P, 'g1_dma_issued')
    vxr = V(4); vwr = V(); vlin = V(); vst = V()
    P(f'v_and_b32 v{t0}, 31, v0'); P(f'v_lshrrev_b32 v{t1}, 5, v0'); P(f'v_bfe_u32 v{t2}, v0, 1, 3')
    P(f'v_xor_b32 v{t1}, v{t1}, v{t2}'); P(f'v_lshlrev_b32 v{t1}, 4, v{t1}'); P(f'v_lshl_add_u32 v{vxr}, v{t0}, 7, v{t1}')
    for ks in range(1, 4): P(f'v_xor_b32 v{vxr+ks}, {32*ks}, v{vxr}')
    P(f'v_lshlrev_b32 v{vst}, 4, v{t0}')
    P(f'v_lshlrev_b32 v{vlin}, 4, v0')
    P(f'v_bfe_u32 v{t0}, v0, 3, 2')
    P(f'v_xor_b32 v{t0}, s{S_WAVE}, v{t0}'); P(f'v_lshlrev_b32 v{vwr}, 5, v{t0}')
    P(f'v_and_b32 v{t0}, 3, v0'); P(f'v_lshl_add_u32 v{vwr}, v{t0}, 3, v{vwr}')
    P(f'v_bfe_u32 v{t0}, v0, 2, 2'); P(f'v_lshl_add_u32 v{vwr}, v{t0}, 7, v{vwr}')
    P(f'v_bfe_u32 v{t0}, v0, 4, 1'); P(f'v_lshl_add_u32 v{vwr}, v{t0}, 11, v{vwr}')
    P(f'v_lshrrev_b32 v{t0}, 5, v0'); P(f'v_lshl_add_u32 v{vwr}, v{t0}, 10, v{vwr}')
    P(f'v_add_u32 v{vwr}, {WRING}, v{vwr}')
    sel = V(4); cs = V(4); ka = V(4); kb = V(4); xf = V(16); stat = V(16); tmp = V(8); hp = V(8)
    P(f'v_lshrrev_b32 v{t0}, 2, v0'); P(f'v_lshrrev_b32 v{t1}, 4, v0'); P(f'v_xor_b32 v{t0}, v{t0}, v{t1}'); P(f'v_and_b32 v{t0}, 1, v{t0}')
    P(f'v_add_u32 v{t0}, -1, v{t0}'); P(f'v_and_b32 v{sel}, 0x3f803f80, v{t0}')
    for i in range(1, 4): P(f'v_mov_b32 v{sel+i}, v{sel}'); P(f'v_mov_b32 v{ka+i}, 0'); P(f'v_mov_b32 v{kb+i}, 0')
    def rd_x(n, t):
        g, ks = divmod(n, 4)
        return (f'ds_read_b128 v[{xf+4*t}:{xf+4*t+3}], v{vxr+ks} offset:{XRING + (g % NX)*16384 + t*4096}', f'rx{t}')
    def rd_w(n, q):
        g, ks = divmod(n, 4)
        return (f'ds_read_b64_tr_b16 a[{4*n+2*q}:{4*n+2*q+1}], v{vwr} offset:{(g % NW)*16384 + ks*4096 + q*512}', 'rw')
    def ld_stat():
        return [f'buffer_load_dwordx4 v[{stat+4*t}:{stat+4*t+3}], v{vst}, s[{R_WS}:{R_WS+3}], s{sSt} offen offset:{512*t} sc1' for t in range(4)] + [f's_xor_b32 s{sSt}, s{sSt}, 2048']
    def epi(ph, t):
        acc = ACC + 64*ph + 16*t; o = hp + 4*(t & 1)
        ops = [f'v_mov_b32 v{kb}, v{stat+4*t}', 'NOP',
               f'v_mfma_f32_32x32x16_bf16 v[{acc}:{acc+15}], v[{ka}:{ka+3}], v[{kb}:{kb+3}], v[{acc}:{acc+15}]']
        body = silu_mul_ops(acc, stat+4*t+1, stat+4*t+2, tmp, o)
        body.append((f'buffer_store_dwordx4 v[{o}:{o+3}], v{vlin}, s[{R_WS}:{R_WS+3}], s{sHo} offen sc1', f'h{ph}'))
        body.append(f's_add_u32 s{sHo}, s{sHo}, {96*1024}')
        return ops, body
    def epi_all(ph):
        pre = [epi(ph, t)[0] for t in range(4)]; body = [epi(ph, t)[1] for t in range(4)]
        seq = [x for x in pre[0] if x != 'NOP'] + [x for x in pre[1] if x != 'NOP']
        for t in range(4):
            b = list(body[t])
            if t + 2 < 4:
                b.insert(8, pre[t+2][0]); b.insert(12, pre[t+2][2])
            seq += b
        return seq
    caug = [f'v_cvt_pk_bf16_f32 v{ka}, v{cs}, v{cs}', f'v_and_b32 v{t0}, 0xffff0000, v{ka}', f'v_sub_f32 v{t0}, v{cs}, v{t0}',
            f'v_cvt_pk_bf16_f32 v{ka}, v{cs}, v{t0}', f'v_cmp_gt_u32 vcc, 32, v0', f'v_mov_b32 v{t1}, 0', f'v_mov_b32 v{t2}, 0', f'v_cndmask_b32 v{ka}, 0, v{ka}, vcc']
    P.wait_tag('x0', 'w0'); P('s_barrier')
    st(P, 'g1_first_landed')
    for op in [rd_w(0, 0), rd_w(0, 1)] + [rd_x(0, t) for t in range(4)]: emit(op)
    dmaq = []; fillq = []; credit = 0.0
    def gap(nd, nf):
        nonlocal credit
        k = 0
        while dmaq and k < nd:
            op = dmaq.pop(0); emit(op)
            if isinstance(op, tuple): k += 1
        while dmaq and not isinstance(dmaq[0], tuple) and 'm0' not in dmaq[0]: emit(dmaq.pop(0))
        credit += nf
        while fillq and credit > 0:
            op = fillq.pop(0); emit(op); credit -= cost(op[0] if isinstance(op, tuple) else op)
        if not fillq: credit = 0.0
    for n in range(80):
        ph, nn = divmod(n, 40); g, ks = divmod(n, 4); last = (n == 79)
        def mf(t):
            acc = ACC + 64*ph + 16*t
            c = '0' if nn == 0 else f'v[{acc}:{acc+15}]'
            P(f'v_mfma_f32_32x32x16_bf16 v[{acc}:{acc+15}], a[{4*nn}:{4*nn+3}], v[{xf+4*t}:{xf+4*t+3}], {c}')
        wnext = [rd_w(n+1, 0), rd_w(n+1, 1)] if n + 1 < 40 else []
        fr = fill_rate if ph else 0
        if n == 30: dmaq += ld_stat()
        if n == 41: fillq += caug + epi_all(0)
        if n == 76:
            assert not fillq, len(fillq)
            dmaq += ld_stat()
        P.wait_tag('rx1', 'rw')
        if ks < 3:
            mf(0)
            for op in wnext[:1] + [rd_x(n+1, 0)]: emit(op)
            gap(0, fr)
            mf(1)
            for op in wnext[1:] + [rd_x(n+1, 1)]: emit(op)
            gap(0 if wnext else 1, fr)
            P.wait_tag('rx3')
            mf(2); emit(rd_x(n+1, 2)); gap(1, fr)
            mf(3); emit(rd_x(n+1, 3)); gap(1 if wnext else 0, fr)
        else:
            mf(0); gap(1, fr+1)
            mf(1)
            if not last:
                assert not dmaq, dmaq
                P.wait(lg=0); P.wait_tag(f'x{g+1}', f'w{g+1}'); P('s_barrier')
                if g + NW < 10: dmaq += dma_w(g+NW)
                if g + NX < 20: dmaq += dma_x(g+NX)
                for op in wnext + [rd_x(n+1, 0)]: emit(op)
            mf(2)
            if not last: emit(rd_x(n+1, 1)); emit(rd_x(n+1, 2))
            mf(3)
            if not last: emit(rd_x(n+1, 3))
            gap(1, fr)
        if ph == 0:
            c = '0' if n == 0 else f'v[{cs}:{cs+3}]'
            P(f'v_mfma_f32_16x16x32_bf16 v[{cs}:{cs+3}], v[{sel}:{sel+3}], a[{4*nn}:{4*nn+3}], {c}')
        if n == 39: st(P, 'g1_phaseA')
    st(P, 'g1_phaseB')
    P(f's_mul_i32 s{S_T0}, s{sA}, {8*96*1024}'); P(f's_sub_u32 s{sHo}, s{sHo}, s{S_T0}')
    for op in epi_all(1): emit(op)
    st(P, 'g1_epiB')
    return V
```

```python
from common import *
from g1 import cost
import os
OPT = os.environ.get('G2OPT', '').split(',')
DRING = 65536; NDG = 4
VB = 0; XS = 32768
HD = 40 if 'deep' in OPT else 24
HA = 96 if 'deep' in OPT else 160

def gen_m1(P, dst, vs1, tmp, scale, h_reg):
    ops = []
    ops.append(f'v_mul_f32 v{tmp}, v{vs1}, v{h_reg}')
    for ks in range(4):
        for q in range(2):
            for ii in range(2):
                g = 8*ks + 4*q + ii
                ops.append(f'v_fmamk_f32 v{tmp+1}, v{vs1}, {fl(float(g))}, v{tmp}')
                ops.append(f'v_cos_f32 v{tmp+2}, v{tmp+1}')
                if g == 0:
                    ops.append(f'v_fmaak_f32 v{tmp+4}, v{vs1}, v{tmp+5}, {fl(0.25)}')
                    ops.append(f'v_cndmask_b32 v{tmp+1}, v{tmp+1}, v{tmp+4}, vcc')
                ops.append(f'v_sin_f32 v{tmp+3}, v{tmp+1}')
                if scale is not None:
                    ops.append(f'v_mul_f32 v{tmp+2}, {fl(scale)}, v{tmp+2}'); ops.append(f'v_mul_f32 v{tmp+3}, {fl(scale)}, v{tmp+3}')
                ops.append(f'v_cvt_pk_bf16_f32 v{dst+4*ks+2*q+ii}, v{tmp+2}, v{tmp+3}')
    return ops

def role_g2(P, st):
    V = Alloc(1, 127)
    sRp, sC, sHb, sDo, sDl, sJ0, sVo, sXo, sSg, sH2, sD2 = range(S_FREE+12, S_FREE+23)
    srd(P, R_C, P_WD, WDB); srd(P, R_D, P_OUT, XB)
    P(f's_lshr_b32 s{S_T0}, s{S_XCD}, 1'); P(f's_lshl_b32 s{S_T0}, s{S_T0}, 2'); P(f's_and_b32 s{S_T1}, s{S_R}, 3'); P(f's_add_u32 s{sRp}, s{S_T0}, s{S_T1}')
    P(f's_and_b32 s{S_T0}, s{S_XCD}, 1'); P(f's_lshl_b32 s{sSg}, s{S_T0}, 31'); P(f's_lshr_b32 s{S_T2}, s{sSg}, 16'); P(f's_or_b32 s{sSg}, s{sSg}, s{S_T2}')
    P(f's_mul_i32 s{S_T0}, s{S_T0}, 5'); P(f's_lshr_b32 s{S_T1}, s{S_R}, 2'); P(f's_add_u32 s{sC}, s{S_T0}, s{S_T1}')
    P(f's_and_b32 s{sJ0}, s{sRp}, 1')
    P(f's_lshl_b32 s{S_T0}, s{sRp}, 2'); P(f's_add_u32 s{S_T0}, s{S_T0}, s{S_WAVE}'); P(f's_mul_i32 s{S_T0}, s{S_T0}, {96*1024}'); P(f's_add_u32 s{S_T0}, s{S_T0}, {WS_H}')
    P(f's_mul_i32 s{S_T2}, s{sJ0}, {24*1024}'); P(f's_add_u32 s{sHb}, s{S_T0}, s{S_T2}')
    P(f's_sub_u32 s{sH2}, s{S_T0}, s{S_T2}'); P(f's_add_u32 s{sH2}, s{sH2}, {24*1024}')
    P(f's_mul_i32 s{S_T0}, s{S_WAVE}, {16*1280}'); P(f's_lshl_b32 s{S_T2}, s{sC}, 7'); P(f's_add_u32 s{S_T0}, s{S_T0}, s{S_T2}')
    P(f's_mul_i32 s{S_T2}, s{sJ0}, {384*1280}'); P(f's_add_u32 s{sDo}, s{S_T0}, s{S_T2}')
    P(f's_sub_u32 s{sD2}, s{S_T0}, s{S_T2}'); P(f's_add_u32 s{sD2}, s{sD2}, {384*1280}')
    P(f's_lshl_b32 s{sDl}, s{S_WAVE}, 11')
    P(f's_lshl_b32 s{S_T0}, s{sRp}, 2'); P(f's_add_u32 s{S_T0}, s{S_T0}, s{S_WAVE}'); P(f's_mul_i32 s{S_T0}, s{S_T0}, 40960')
    P(f's_lshl_b32 s{S_T1}, s{S_T1}, 7'); P(f's_add_u32 s{S_T0}, s{S_T0}, s{S_T1}'); P(f's_add_u32 s{sVo}, s{S_T0}, {WS_V}')
    P(f's_lshr_b32 s{S_T0}, s{S_WAVE}, 1'); P(f's_and_b32 s{S_T1}, s{S_WAVE}, 1'); P(f's_lshl_b32 s{S_T1}, s{S_T1}, 10'); P(f's_add_u32 s{S_T0}, s{S_T0}, s{S_T1}')
    P(f's_lshl_b32 s{S_T1}, s{sRp}, 1'); P(f's_add_u32 s{S_T0}, s{S_T0}, s{S_T1}'); P(f's_mul_i32 s{S_T0}, s{S_T0}, 1280')
    P(f's_lshl_b32 s{S_T1}, s{sC}, 7'); P(f's_add_u32 s{sXo}, s{S_T0}, s{S_T1}')
    t0 = V(); t1 = V(); t2 = V(); vdd = V(2); vlin = V(); vvd = V(4); vxd = V(4)
    P(f'v_lshrrev_b32 v{t0}, 3, v0'); P(f'v_and_b32 v{t1}, 7, v0')
    P(f'v_and_b32 v{t2}, 2, v{t0}'); P(f'v_lshlrev_b32 v{t2}, 1, v{t2}'); P(f'v_xor_b32 v{t2}, v{t2}, v{t1}'); P(f'v_lshlrev_b32 v{t2}, 4, v{t2}')
    P(f'v_mul_u32_u24 v{vdd}, 1280, v{t0}'); P(f'v_add_u32 v{vdd}, v{vdd}, v{t2}'); P(f'v_add_u32 v{vdd+1}, {8*1280-1024}, v{vdd}')
    P(f'v_lshlrev_b32 v{vlin}, 4, v0')
    def dma_d(sl):
        ops = [f's_add_u32 m0, s{sDl}, {DRING + (sl % (3*NDG))*8192}']
        for i in range(2): ops.append((f'buffer_load_dwordx4 v{vdd+i}, s[{R_C}:{R_C+3}], s{sDo} offen offset:{1024*i} lds', f'd{sl//3}'))
        if sl == 11: ops.append(f's_mov_b32 s{sDo}, s{sD2}')
        else: ops.append(f's_add_u32 s{sDo}, s{sDo}, {64*1280*(7 if sl % 6 == 5 else 1)}')
        return ops
    def ld_h(n):
        r = HA + 4*(n % HD); sl, ks = divmod(n, 4)
        ops = [(f'buffer_load_dwordx4 a[{r}:{r+3}], v{vlin}, s[{R_WS}:{R_WS+3}], s{sHb} offen offset:{1024*ks}' + ('' if 'nosc1' in OPT else ' sc1'), 'h')]
        if ks == 3:
            if sl == 11: ops.append(f's_mov_b32 s{sHb}, s{sH2}')
            else: ops.append(f's_add_u32 s{sHb}, s{sHb}, {4096*(7 if sl % 6 == 5 else 1)}')
        return ops
    def emit(op):
        if isinstance(op, tuple): P(op[0], tag=op[1])
        else: P(op)
    LEAD = 32 if 'deep' in OPT else 16
    for sl in range(3):
        for op in dma_d(sl): emit(op)
        for n in range(4*sl, 4*sl+4):
            for op in ld_h(n): emit(op)
    for op in dma_d(3): emit(op)
    for n in range(12, LEAD):
        for op in ld_h(n): emit(op)
    st(P, 'g2_issued')
    P(f'v_mul_u32_u24 v{vvd}, 640, v{t0}'); P(f'v_add_u32 v{vvd}, v{vvd}, v{t2}')
    for i in range(1, 4): P(f'v_add_u32 v{vvd+i}, {i*(8*640-1024)}, v{vvd}')
    P(f'v_lshrrev_b32 v{t2}, 4, v0'); P(f'v_xor_b32 v{t2}, v{t2}, v{t1}'); P(f'v_lshlrev_b32 v{t2}, 4, v{t2}')
    P(f'v_mul_u32_u24 v{vxd}, 40960, v{t0}'); P(f'v_add_u32 v{vxd}, v{vxd}, v{t2}')
    P(f'v_xor_b32 v{vxd+1}, 64, v{vxd}'); P(f'v_add_u32 v{vxd+1}, {8*40960-1024}, v{vxd+1}')
    P(f'v_add_u32 v{vxd+2}, {16*40960-2048}, v{vxd}'); P(f'v_add_u32 v{vxd+3}, {16*40960-2048}, v{vxd+1}')
    vtr = V(2); vtr2 = V(2); vtv = V(2); vxr = V(4); vor = V()
    P(f'v_and_b32 v{t0}, 1, v0'); P(f'v_lshlrev_b32 v{vtr}, 5, v{t0}')
    P(f'v_bfe_u32 v{t0}, v0, 1, 1'); P(f'v_lshl_add_u32 v{vtr}, v{t0}, 3, v{vtr}')
    P(f'v_bfe_u32 v{t0}, v0, 4, 1'); P(f'v_lshl_add_u32 v{vtr}, v{t0}, 4, v{vtr}')
    P(f'v_bfe_u32 v{t0}, v0, 3, 1'); P(f'v_lshl_add_u32 v{vtr}, v{t0}, 6, v{vtr}')
    P(f'v_bfe_u32 v{t0}, v0, 2, 2'); P(f'v_lshl_add_u32 v{vtr}, v{t0}, 7, v{vtr}')
    P(f'v_lshrrev_b32 v{t0}, 5, v0'); P(f'v_lshl_add_u32 v{vtr}, v{t0}, 9, v{vtr}')
    P(f's_lshr_b32 s{S_T0}, s{S_WAVE}, 1'); P(f's_lshl_b32 s{S_T0}, s{S_T0}, 14')
    P(f'v_add_u32 v{vtv}, s{S_T0}, v{vtr}'); P(f'v_xor_b32 v{vtv+1}, 64, v{vtv}')
    P(f'v_add_u32 v{vtr}, {DRING}, v{vtr}'); P(f'v_xor_b32 v{vtr+1}, 64, v{vtr}')
    P(f'v_add_u32 v{vtr2}, 49152, v{vtr}'); P(f'v_add_u32 v{vtr2+1}, 49152, v{vtr+1}')
    P(f'v_and_b32 v{t0}, 31, v0'); P(f'v_lshrrev_b32 v{t1}, 5, v0'); P(f'v_lshlrev_b32 v{t1}, 1, v{t1}'); P(f'v_bfe_u32 v{t2}, v0, 1, 3')
    P(f'v_xor_b32 v{t2}, v{t1}, v{t2}'); P(f'v_lshlrev_b32 v{t2}, 4, v{t2}'); P(f'v_lshl_add_u32 v{vxr}, v{t0}, 7, v{t2}')
    P(f's_lshl_b32 s{S_T0}, s{S_WAVE}, 12'); P(f's_add_u32 s{S_T0}, s{S_T0}, {XS}')
    P(f'v_add_u32 v{vxr}, s{S_T0}, v{vxr}'); P(f'v_add_u32 v{vor}, s{S_T0}, v{vlin}')
    P(f'v_xor_b32 v{vxr+1}, 16, v{vxr}'); P(f'v_xor_b32 v{vxr+2}, 64, v{vxr}'); P(f'v_xor_b32 v{vxr+3}, 80, v{vxr}')
    wf = V(16); m1 = V(16); m1n = V(16); tmp = V(16); vs1 = V(); vh = V()
    ACC = 128; SAC = 160; XF = 192; XP = 224
    P(f's_and_b32 s{S_T1}, s{S_WAVE}, 1'); P(f's_lshl_b32 s{S_T1}, s{S_T1}, 5')
    P(f'v_add_u32 v{t0}, s{S_T1}, v{t0}'); P(f'v_cvt_f32_u32 v{vs1}, v{t0}'); P(f'v_mul_f32 v{vs1}, {fl(1/64)}, v{vs1}'); P(f'v_cvt_f32_u32 v{vh}, v{t1}')
    P(f'v_mov_b32 v{tmp+5}, {fl(32.0)}'); P('v_cmp_gt_u32 vcc, 32, v0')
    fillq = gen_m1(P, m1, vs1, tmp, None, vh) + [f'v_xor_b32 v{m1n+i}, s{sSg}, v{m1+i}' for i in range(16)]
    vdma = []
    for hf in range(2):
        vdma.append(f's_lshl_b32 s{S_T0}, s{S_WAVE}, 13'); vdma.append(f's_add_u32 m0, s{S_T0}, {VB + 4096*hf}')
        for i in range(4): vdma.append((f'buffer_load_dwordx4 v{vvd+i}, s[{R_WS}:{R_WS+3}], s{sVo} offen offset:{1024*i} sc1 lds', 'v'))
        vdma.append(f's_add_u32 s{sVo}, s{sVo}, {32*640}')
    xdma = [f's_lshl_b32 s{S_T0}, s{S_WAVE}, 12', f's_add_u32 m0, s{S_T0}, {XS}'] + \
           [(f'buffer_load_dwordx4 v{vxd+i}, s[{R_X}:{R_X+3}], s{sXo} offen offset:{1024*i} lds', 'x') for i in range(4)]
    xrd = [f'ds_read_b128 v[{XP+4*i}:{XP+4*i+3}], v{vxr+i}' for i in range(4)]
    xun = []
    for i in range(16):
        xun.append(f'v_lshlrev_b32 v{XF+2*i}, 16, v{XP+i}'); xun.append(f'v_and_b32 v{XF+2*i+1}, 0xffff0000, v{XP+i}')
    def rd_d(n, dt, q):
        sl, ks = divmod(n, 4); slot = sl % (3*NDG)
        base = vtr if slot < 6 else vtr2; off = (slot % 6)*8192 + ks*2048 + q*1024
        r = wf + 8*(n & 1) + 4*dt + 2*q
        return (f'ds_read_b64_tr_b16 v[{r}:{r+1}], v{base+dt} offset:{off}', f'rd{n&1}')
    P.wait_tag('d0'); P('s_barrier')
    st(P, 'g2_first')
    for dt in range(2):
        for q in range(2): emit(rd_d(0, dt, q))
    dmaq = dma_d(4) + dma_d(5)
    nxt = 6
    def pop_dma(nd):
        k = 0
        while dmaq and k < nd:
            op = dmaq.pop(0); emit(op)
            if isinstance(op, tuple): k += 1
        while dmaq and not isinstance(dmaq[0], tuple) and 'm0' not in dmaq[0] and f's{S_T0},' not in dmaq[0]: emit(dmaq.pop(0))
    def pop_fill(c):
        while fillq and c > 0:
            op = fillq.pop(0); emit(op); c -= cost(op)
    for n in range(96):
        sl, ks = divmod(n, 4); grp, gi = divmod(n, 12)
        hr = HA + 4*(n % HD)
        def mf(dt):
            acc = ACC + 16*dt; c = '0' if n == 0 else f'v[{acc}:{acc+15}]'; r = wf + 8*(n & 1) + 4*dt
            if 'nomfma' in OPT and dt == 1 and n: return
            P(f'v_mfma_f32_32x32x16_bf16 v[{acc}:{acc+15}], v[{r}:{r+3}], a[{hr}:{hr+3}], {c}')
        if n == 58: dmaq += xdma
        if n == 74: dmaq += vdma
        if n == 76: P.wait_tag('x'); fillq += xrd + xun
        P.wait_tag(f'rd{n&1}')
        if gi == 11 and n != 95:
            assert not any(isinstance(o, tuple) and o[1] == f'd{grp+1}' for o in dmaq) and nxt >= 3*grp+6
            P.wait_tag(f'd{grp+1}'); P('s_barrier')
        if ks == 0 and n > 0 and nxt < 24 and (nxt // 3) - NDG < grp:
            dmaq += dma_d(nxt); nxt += 1
        mf(0)
        if n < 95: emit(rd_d(n+1, 0, 0)); emit(rd_d(n+1, 0, 1))
        if n + LEAD < 96:
            for op in ld_h(n + LEAD): emit(op)
        mf(1)
        if n < 95 and 'nomfma' not in OPT: emit(rd_d(n+1, 1, 0)); emit(rd_d(n+1, 1, 1))
        pop_dma(1); pop_fill(3)
    assert not dmaq and not fillq and nxt == 24, (dmaq, len(fillq), nxt)
    st(P, 'g2_loop')
    P.wait_tag('v'); P('s_barrier')
    seq = [(p, ks) for p in range(2) for ks in range(4)]
    def rd_v(i, dt, q):
        p, ks = seq[i]; r = wf + 8*(i & 1) + 4*dt + 2*q
        return f'ds_read_b64_tr_b16 v[{r}:{r+1}], v{vtv+dt} offset:{VB + p*8192 + ks*2048 + q*1024}'
    pre = []
    TQ = 224
    for i in range(0, 32, 4):
        for j in range(4): pre.append(f'v_mul_f32 v{TQ+i+j}, {fl(-LOG2E)}, v{ACC+i+j}')
        for j in range(4): pre.append(f'v_exp_f32 v{TQ+i+j}, v{TQ+i+j}')
        for j in range(4): pre.append(f'v_fmaak_f32 v{TQ+i+j}, v{tmp+5}, v{TQ+i+j}, {fl(2048.0)}')
        for j in range(4): pre.append(f'v_rcp_f32 v{TQ+i+j}, v{TQ+i+j}')
        for j in range(4): pre.append(f'v_mul_f32 v{TQ+i+j}, v{TQ+i+j}, v{ACC+i+j}')
    P(f'v_mov_b32 v{tmp+5}, {fl(2048.0)}')
    fillq += pre
    for dt in range(2):
        for q in range(2): P(rd_v(0, dt, q))
    for i in range(8):
        p, ks = seq[i]; mm = (m1n if p else m1) + 4*ks
        for dt in range(2):
            acc = SAC + 16*dt; c = '0' if i == 0 else f'v[{acc}:{acc+15}]'; r = wf + 8*(i & 1) + 4*dt
            P(f'v_mfma_f32_32x32x16_bf16 v[{acc}:{acc+15}], v[{r}:{r+3}], v[{mm}:{mm+3}], {c}')
            if i < 7: P(rd_v(i+1, dt, 0)); P(rd_v(i+1, dt, 1))
            pop_fill(10)
    pop_fill(10000)
    for c4 in range(4):
        for i in range(8*c4, 8*c4+8, 2):
            P(f'v_pk_fma_f32 v[{XF+i}:{XF+i+1}], v[{TQ+i}:{TQ+i+1}], v[{SAC+i}:{SAC+i+1}], v[{XF+i}:{XF+i+1}]')
        for i in range(4): P(f'v_cvt_pk_bf16_f32 v{wf+4*c4+i}, v{XF+8*c4+2*i}, v{XF+8*c4+2*i+1}')
        P(f'ds_write_b128 v{vxr+c4}, v[{wf+4*c4}:{wf+4*c4+3}]')
    P.wait(lg=0)
    for i in range(4): P(f'ds_read_b128 v[{tmp+4*i}:{tmp+4*i+3}], v{vor} offset:{1024*i}')
    for i in range(4): P(f'buffer_store_dwordx4 v[{tmp+4*i}:{tmp+4*i+3}], v{vxd+i}, s[{R_D}:{R_D+3}], s{sXo} offen offset:{1024*i}')
    st(P, 'g2_stored')
```

```python
import re

REG_RE = re.compile(r'^(-?)(?:abs\(|\|)?([vas])(?:(\d+)|\[(\d+):(\d+)\])\)?\|?$')
def regs_of(op):
    op = op.strip()
    m = REG_RE.match(op)
    if m:
        k = m.group(2)
        if m.group(3) is not None:
            return [(k, int(m.group(3)))]
        return [(k, i) for i in range(int(m.group(4)), int(m.group(5)) + 1)]
    if op in ('vcc', 'exec', 'm0'): return [(op, 0)]
    if op in ('vcc_lo', 'vcc_hi'): return [('vcc', 0)]
    if op in ('exec_lo', 'exec_hi'): return [('exec', 0)]
    return []

TRANS = ('v_exp_f32', 'v_log_f32', 'v_rcp_f32', 'v_rsq_f32', 'v_sqrt_f32', 'v_sin_f32', 'v_cos_f32')
RMW = ('v_fmac_f32', 'v_dot2c_f32_bf16', 'v_pk_fmac', 'v_writelane_b32')

class Ins:
    __slots__ = ('text', 'mn', 'kind', 'w', 'r', 'passes', 'srcc', 'srcab', 'tag', 'wide', 'dpp', 'sdwa')

def parse(text):
    I = Ins(); I.text = text; I.tag = None; I.passes = 0; I.srcc = []; I.srcab = []; I.wide = False; I.dpp = False; I.sdwa = False
    t = text.split(';')[0].strip()
    parts = t.split(None, 1); mn = parts[0]; I.mn = mn
    rest = parts[1] if len(parts) > 1 else ''
    ops = []; depth = 0; cur = ''
    for ch in rest:
        if ch in '[(': depth += 1
        if ch in '])': depth -= 1
        if ch == ',' and depth == 0: ops.append(cur.strip()); cur = ''
        else: cur += ch
    if cur.strip(): ops.append(cur.strip())
    mods = ''
    if ops:
        last = ops[-1].split(None, 1)
        ops[-1] = last[0]; mods = last[1] if len(last) > 1 else ''
    R = [regs_of(o) for o in ops]
    flat = lambda L: [x for l in L for x in l]
    w, r = [], []
    base = re.sub(r'_(e32|e64|dpp|sdwa)$', '', mn)
    if mn.startswith('v_mfma'):
        I.kind = 'mfma'
        w = R[0]; I.srcab = R[1] + R[2]; I.srcc = R[3]; r = I.srcab + I.srcc
        I.passes = 8 if '32x32x16' in mn or '32x32x8' in mn else 4 if '16x16x32' in mn or '16x16x16' in mn else None
        assert I.passes, mn
    elif mn.startswith('v_cmp'):
        I.kind = 'valu'; w = R[0]; r = flat(R[1:])
        if mn.startswith('v_cmpx'): w = w + [('exec', 0)]
    elif base in ('v_readfirstlane_b32', 'v_readlane_b32'):
        I.kind = 'valu'; w = R[0]; r = flat(R[1:])
    elif base in ('v_permlane32_swap_b32', 'v_permlane16_swap_b32', 'v_swap_b32'):
        I.kind = 'valu'; w = R[0] + R[1]; r = R[0] + R[1]
    elif base in ('v_add_co_u32', 'v_sub_co_u32', 'v_addc_co_u32', 'v_subb_co_u32'):
        I.kind = 'valu'; w = R[0] + R[1]; r = flat(R[2:])
    elif mn.startswith('v_'):
        I.kind = 'trans' if base in TRANS else 'dot' if base.startswith('v_dot') else 'valu'
        w = R[0]; r = flat(R[1:])
        if base in RMW: r = r + R[0]
        if any(k in mods for k in ('quad_perm', 'row_', 'wave_')): I.dpp = True; r = r + R[0]
        if 'dst_sel' in mods: I.sdwa = True; r = r + R[0]
    elif mn.startswith('ds_read') or mn.startswith('ds_bpermute') or mn.startswith('ds_swizzle'):
        I.kind = 'dsr'; w = R[0]; r = flat(R[1:])
    elif mn.startswith('ds_write') or mn.startswith('ds_add'):
        I.kind = 'dsw'; r = flat(R)
    elif mn.startswith('buffer_load'):
        if re.search(r'\blds\b', mods):
            I.kind = 'dma'; r = flat(R) + [('m0', 0)]
        else:
            I.kind = 'vld'; w = R[0]; r = flat(R[1:])
            if 'd16' in mn: r = r + R[0]
    elif mn.startswith('global_load'):
        I.kind = 'vld'; w = R[0]; r = flat(R[1:])
    elif mn.startswith('buffer_store') or mn.startswith('global_store'):
        I.kind = 'vst'; r = flat(R); I.wide = mn.endswith('x4') or mn.endswith('x3')
        I.srcc = R[0] if mn.startswith('buffer') else R[1]
    elif mn.startswith('buffer_atomic') or mn.startswith('global_atomic'):
        I.kind = 'vst'; r = flat(R)
        assert 'sc0' not in mods
    elif mn.startswith('s_load') or mn.startswith('s_memtime') or mn.startswith('s_memrealtime'):
        I.kind = 'smem'; w = R[0]; r = flat(R[1:])
    elif mn in ('s_waitcnt', 's_barrier', 's_nop', 's_endpgm', 's_sleep', 's_setprio'):
        I.kind = mn
    elif mn.startswith('s_cbranch') or mn == 's_branch':
        I.kind = 'branch'
        if 'vcc' in mn: r = [('vcc', 0)]
        if 'exec' in mn: r = [('exec', 0)]
    elif mn.startswith('s_cmp') or mn.startswith('s_bitcmp'):
        I.kind = 'salu'; r = flat(R)
    elif mn.startswith('s_'):
        I.kind = 'salu'; w = R[0]; r = flat(R[1:])
        if 'saveexec' in mn: w = w + [('exec', 0)]; r = r + [('exec', 0)]
        if mn in ('s_addk_i32', 's_mulk_i32', 's_cmov_b32', 's_cmov_b64', 's_cmovk_i32'): r = r + R[0]
    else:
        raise ValueError('unparsed: ' + text)
    if base == 'v_cndmask_b32' and len(ops) == 3: r = r + [('vcc', 0)]
    I.w = w; I.r = r
    return I

VALUK = ('valu', 'trans', 'dot')
class Prog:
    def __init__(self):
        self.out = []
        self.hist = []
        self.vm = []
        self.lg = []
        self.nlab = 0
        self.count = {}
        self.nops = 0
    def raw(self, text):
        self.out.append(text)
    def comment(self, c):
        self.out.append('    ; ' + c)
    def _push(self, I, states=1):
        self.out.append('    ' + I.text)
        self.hist.append((I, states))
        if len(self.hist) > 40: self.hist.pop(0)
        self.count[I.kind] = self.count.get(I.kind, 0) + 1
    def wait(self, vm=None, lg=None):
        parts = []
        if vm is not None and vm < len(self.vm):
            n = min(vm, 63); parts.append(f'vmcnt({n})'); self.vm = self.vm[len(self.vm) - n:] if n else []
        if lg is not None and lg < len(self.lg):
            n = min(lg, 15)
            if any(o.kind == 'smem' for o in self.lg): n = 0
            parts.append(f'lgkmcnt({n})'); self.lg = self.lg[len(self.lg) - n:] if n else []
        if parts:
            self._push(parse('s_waitcnt ' + ' '.join(parts)))
    def wait_tag(self, *tags):
        vm = lg = None
        for i, o in enumerate(self.vm):
            if o.tag in tags: vm = len(self.vm) - 1 - i
        for i, o in enumerate(self.lg):
            if o.tag in tags: lg = len(self.lg) - 1 - i
        self.wait(vm, lg)
    def wait_all(self):
        self.wait(0, 0)
    def _need_states(self, I):
        need = 0; dist = 0
        rs = set(I.r); ws = set(I.w); ab = set(I.srcab); cc = set(I.srcc) if I.kind == 'mfma' else set()
        isvalu = I.kind in VALUK
        ismem = I.kind in ('dsr', 'dsw', 'dma', 'vld', 'vst')
        for P, st in reversed(self.hist):
            pw = set(P.w); req = 0
            pvalu = P.kind in VALUK
            if P.kind == 'mfma':
                n = P.passes
                if I.kind == 'mfma':
                    if ab & pw: req = max(req, {4: 8, 8: 12}[n])
                    if cc & pw:
                        if not (I.srcc == P.w and I.passes == P.passes): req = max(req, {4: 6, 8: 10}[n])
                    elif ws & pw: req = max(req, {4: 8, 8: 12}[n])
                elif isvalu or ismem:
                    if (rs | ws) & pw: req = max(req, {4: 8, 8: 12}[n])
                    if ws & set(P.srcc): req = max(req, {4: 3, 8: 7}[n])
            if pvalu:
                vw = {x for x in pw if x[0] in 'va'}
                sw = {x for x in pw if x[0] in ('s', 'vcc')}
                if I.kind == 'mfma' and rs & vw: req = max(req, 2)
                if P.kind == 'trans' and (isvalu or ismem) and rs & vw: req = max(req, 1)
                if P.kind == 'dot' and (rs | ws) & vw and (isvalu or ismem or I.kind == 'mfma'):
                    chain = I.mn == P.mn and I.w == P.w and len(rs & vw) == 1 and I.r.count(P.w[0]) == 1
                    if not chain: req = max(req, 3)
                if P.sdwa and isvalu and (rs | ws) & vw: req = max(req, 1)
                if I.dpp and rs & vw: req = max(req, 2)
                if I.mn.startswith('v_permlane') and rs & vw: req = max(req, 2)
                if I.mn.startswith('v_read') and rs & vw: req = max(req, 1)
                if sw & rs:
                    if ismem: req = max(req, 5)
                    elif I.mn.startswith('v_readlane') or I.mn.startswith('v_writelane'): req = max(req, 4)
                    elif isvalu: req = max(req, 2)
                    else: req = max(req, 1)
                if ('exec', 0) in pw:
                    if I.dpp: req = max(req, 5)
                    elif I.kind == 'mfma' or I.mn.startswith('v_read') or I.mn.startswith('v_permlane') or I.mn.startswith('v_write'): req = max(req, 4)
            if P.kind == 'vst' and P.wide and ws & set(P.srcc): req = max(req, 2)
            if P.kind == 'salu' and ('m0', 0) in pw and I.kind == 'dma': req = max(req, 1)
            if P.kind == 'salu' and ('exec', 0) in pw and I.dpp: req = max(req, 1)
            need = max(need, req - dist)
            dist += st
            if dist >= 20: break
        return need
    def __call__(self, text, tag=None):
        for line in text.split('\n'):
            line = line.strip()
            if not line: continue
            if line.startswith(';'): self.out.append('    ' + line); continue
            if line.endswith(':'): self.out.append(line); continue
            I = parse(line); I.tag = tag
            if I.kind == 's_nop':
                self._push(I, int(line.split()[1]) + 1); continue
            assert I.kind != 's_waitcnt', 'use wait()'
            touched = set(I.r) | set(I.w)
            vm = lg = None
            for i, o in enumerate(self.vm):
                if touched & set(o.w):
                    if I.kind == 'vld' and not ((set(I.r) - set(I.w)) & set(o.w)): continue
                    vm = len(self.vm) - 1 - i
            for i, o in enumerate(self.lg):
                if touched & set(o.w): lg = len(self.lg) - 1 - i
            self.wait(vm, lg)
            n = self._need_states(I)
            while n > 0:
                k = min(n, 16); self._push(parse(f's_nop {k-1}'), k); n -= k; self.nops += k
            self._push(I)
            if I.kind in ('vld', 'vst', 'dma'): self.vm.append(I)
            if I.kind in ('dsr', 'dsw', 'smem'): self.lg.append(I)
    def label(self, base='L'):
        self.nlab += 1
        return f'{base}_{self.nlab}'
    def settle(self):
        self('s_nop 15')
    def text(self):
        return '\n'.join(self.out) + '\n'

def v(i, n=1): return f'v{i}' if n == 1 else f'v[{i}:{i+n-1}]'
def a(i, n=1): return f'a{i}' if n == 1 else f'a[{i}:{i+n-1}]'
def s(i, n=1): return f's{i}' if n == 1 else f's[{i}:{i+n-1}]'

class Alloc:
    def __init__(self, start, end): self.p = start; self.end = end; self.hi = start
    def __call__(self, n=1, align=None):
        al = align or (1 if n == 1 else 2)
        self.p = (self.p + al - 1) // al * al
        r = self.p; self.p += n; self.hi = max(self.hi, self.p)
        assert self.p <= self.end, f'out of registers {self.p} > {self.end}'
        return r
    def mark(self): return self.p
    def release(self, m): self.p = m
```

```python
from common import *
from g1 import cost
XT = 0
ZB = 40960
STG = 81920
SST = 123904
A2B = 124928
ROWP = 656
sG, sP, sSig, sTb, sO1, sO2, sK0, sFs = range(S_FREE, S_FREE+8)
sW = S_FREE + 8
sMask, sG0 = S_FREE+16, S_FREE+18
MF = 'v_mfma_f32_16x16x32_bf16'
def q4(r, k='v'): return f'{k}[{r}:{r+3}]'
def q2(r, k='v'): return f'{k}[{r}:{r+1}]'

class Ctx: pass

def spec_setup(P):
    C = Ctx(); V = C.V = Alloc(1, 127)
    P(f's_sub_u32 s{S_T0}, s{S_R}, 24'); P(f's_and_b32 s{sP}, s{S_T0}, 1'); P(f's_lshr_b32 s{S_T0}, s{S_T0}, 1')
    P(f's_lshl_b32 s{sG}, s{S_XCD}, 2'); P(f's_add_u32 s{sG}, s{sG}, s{S_T0}')
    P(f's_mul_i32 s{sSig}, s{sP}, 0x80008000')
    P(f's_mul_i32 s{sTb}, s{S_WAVE}, 5'); P(f's_lshr_b32 s{sTb}, s{sTb}, 1')
    P(f's_sub_u32 s{sK0}, 2, s{sP}')
    C.t0, C.t1, C.t2, C.t3 = V(), V(), V(), V()
    C.g = V(); C.n = V(); C.lin = V(); C.g4f = V(); C.stw = V(); C.strd = V()
    P(f'v_lshrrev_b32 v{C.g}, 4, v0'); P(f'v_and_b32 v{C.n}, 15, v0'); P(f'v_lshlrev_b32 v{C.lin}, 4, v0')
    P(f'v_cvt_f32_u32 v{C.g4f}, v{C.g}'); P(f'v_mul_f32 v{C.g4f}, 4.0, v{C.g4f}')
    P(f'v_lshrrev_b32 v{C.t0}, 3, v0'); P(f'v_and_b32 v{C.t1}, 7, v0'); P(f'v_mul_u32_u24 v{C.strd}, {ROWP}, v{C.t0}'); P(f'v_lshl_add_u32 v{C.strd}, v{C.t1}, 4, v{C.strd}')
    P(f's_mul_i32 s{S_T0}, s{S_WAVE}, {16*ROWP}'); P(f's_add_u32 s{S_T0}, s{S_T0}, {STG}'); P(f'v_add_u32 v{C.strd}, s{S_T0}, v{C.strd}')
    return C

def stage_out(P, C, voff, soff, step8, tmp, tag):
    for hf in range(2):
        for c in range(5): P(f'ds_read_b128 {q4(tmp+4*(5*hf+c))}, v{C.strd} offset:{hf*8*ROWP + c*128}')
    for hf in range(2):
        for c in range(5): P(f'buffer_store_dwordx4 {q4(tmp+4*(5*hf+c))}, v{voff}, s[{R_WS}:{R_WS+3}], s{soff} offen offset:{c*128} sc1', tag=tag)
        if hf == 0: P(f's_add_u32 s{soff}, s{soff}, {step8}')

def s1_issue(P, C):
    V = C.V; t0, t1, t2 = C.t0, C.t1, C.t2
    vx = V()
    P(f'v_lshrrev_b32 v{t0}, 3, v0'); P(f'v_and_b32 v{t1}, 7, v0'); P(f'v_and_b32 v{t2}, 6, v{t0}'); P(f'v_xor_b32 v{t2}, v{t2}, v{t1}')
    P(f'v_mul_u32_u24 v{vx}, 40960, v{t0}'); P(f'v_lshl_add_u32 v{vx}, v{t2}, 4, v{vx}')
    P(f's_lshl_b32 s{S_T0}, s{S_WAVE}, 9'); P(f's_add_u32 s{S_T0}, s{S_T0}, s{sG}'); P(f's_mul_i32 s{sO1}, s{S_T0}, 1280')
    P(f's_mul_i32 s{S_T1}, s{S_WAVE}, 20480')
    for hf in range(2):
        for cb in range(10):
            P(f's_add_u32 m0, s{S_T1}, {XT + (hf*10+cb)*1024 - cb*128}')
            P(f'buffer_load_dwordx4 v{vx}, s[{R_X}:{R_X+3}], s{sO1} offen offset:{cb*128} lds', tag=f'x{hf}_{cb}')
        if hf == 0: P(f's_add_u32 s{sO1}, s{sO1}, {8*40960}')

def s1_genm(P, C, M):
    t0, t1, t2, t3 = C.t0, C.t1, C.t2, C.t3
    P(f'v_lshrrev_b32 v{t0}, 1, v{C.g}'); P(f'v_and_b32 v{t1}, 1, v{C.g}'); P(f'v_lshlrev_b32 v{t0}, 2, v{t0}'); P(f'v_add_lshl_u32 v{t0}, v{t0}, v{t1}, 2')
    P(f'v_cvt_f32_u32 v{t3}, v{t0}')
    P(f's_and_b32 s{S_T0}, s{S_WAVE}, 1'); P(f's_lshl_b32 s{S_T0}, s{S_T0}, 5')
    for nt in range(2):
        P(f'v_add_u32 v{t0}, s{S_T0}, v{C.n}')
        if nt: P(f'v_add_u32 v{t0}, 16, v{t0}')
        else:
            P(f'v_cmp_eq_u32 vcc, 1, v{t0}'); P(f'v_cndmask_b32 v{t0}, v{t0}, 64, vcc')
        P(f'v_and_b32 v{t1}, 1, v{t0}'); P(f'v_lshrrev_b32 v{t0}, 1, v{t0}')
        P(f'v_cvt_f32_u32 v{t1}, v{t1}'); P(f'v_cvt_f32_u32 v{t0}, v{t0}')
        P(f'v_mul_f32 v{t0}, {fl(1/64)}, v{t0}'); P(f'v_mul_f32 v{t1}, {fl(-0.25)}, v{t1}')
        P(f'v_fmac_f32 v{t1}, v{t0}, v{t3}')
        for ks in range(2):
            for j in range(8): P(f'v_fmamk_f32 v{M+16*nt+8*ks+j}, v{t0}, {fl(float(32*ks + 8*(j>>2) + (j&3)))}, v{t1}')
        for i in range(16): P(f'v_cos_f32 v{M+16*nt+i}, v{M+16*nt+i}')

def s1_main(P, C, st, M, B):
    V = C.V; t0, t1, t2, t3 = C.t0, C.t1, C.t2, C.t3
    mk = V.mark()
    va = V(10); vrd = V(); ones = V(); sacc = V(4); rec = V(4)
    P(f'v_bfe_u32 v{t0}, v0, 2, 3'); P(f'v_lshlrev_b32 v{t0}, 7, v{t0}'); P(f'v_lshrrev_b32 v{t1}, 5, v0'); P(f'v_mul_u32_u24 v{t1}, 20480, v{t1}'); P(f'v_add_u32 v{t0}, v{t0}, v{t1}')
    P(f'v_and_b32 v{t1}, 3, v0'); P(f'v_lshl_add_u32 v{t0}, v{t1}, 3, v{t0}'); P(f'v_bfe_u32 v{t1}, v0, 3, 2'); P(f'v_lshl_add_u32 v{t0}, v{t1}, 5, v{t0}')
    P(f's_lshr_b32 s{S_T0}, s{S_WAVE}, 1'); P(f's_mul_i32 s{S_T0}, s{S_T0}, 5')
    for tt in range(5):
        for mir in range(2):
            if mir: P(f's_sub_u32 s{S_T1}, {19-tt}, s{S_T0}')
            else: P(f's_add_u32 s{S_T1}, s{S_T0}, {tt}')
            P(f's_and_b32 s{S_T2}, s{S_T1}, 3'); P(f's_lshl_b32 s{S_T2}, s{S_T2}, 5')
            if mir: P(f's_or_b32 s{S_T2}, s{S_T2}, 24')
            P(f's_lshr_b32 s{S_T1}, s{S_T1}, 2'); P(f's_lshl_b32 s{S_T1}, s{S_T1}, 10')
            P(f'v_xor_b32 v{va+2*tt+mir}, s{S_T2}, v{t0}'); P(f'v_add_u32 v{va+2*tt+mir}, s{S_T1}, v{va+2*tt+mir}')
    P(f's_and_b32 s{S_T1}, s{S_WAVE}, 1'); P(f's_mul_i32 s{S_T1}, s{S_T1}, {32*ROWP}'); P(f's_add_u32 s{S_T1}, s{S_T1}, {STG}')
    P(f'v_mul_u32_u24 v{C.stw}, {ROWP}, v{C.n}'); P(f'v_lshl_add_u32 v{C.stw}, v{C.g}, 4, v{C.stw}'); P(f'v_add_u32 v{C.stw}, s{S_T1}, v{C.stw}')
    stw2 = V()
    P(f's_lshr_b32 s{S_T0}, s{S_WAVE}, 1'); P(f's_mul_i32 s{S_T1}, s{S_T0}, {192-8}'); P(f's_add_u32 s{S_T1}, s{S_T1}, 8'); P(f's_mul_i32 s{S_T0}, s{S_T0}, {128+8}')
    P(f'v_add_u32 v{stw2}, s{S_T1}, v{C.stw}'); P(f'v_add_u32 v{C.stw}, s{S_T0}, v{C.stw}')
    P(f's_mul_i32 s{S_T1}, s{S_WAVE}, 20480'); P(f'v_add_u32 v{vrd}, s{S_T1}, v{C.lin}')
    P(f'v_mov_b32 v{ones}, 0x3f803f80')
    for i in range(4): P(f'v_mov_b32 v{sacc+i}, 0')
    blk = [(hf, cb) for hf in range(2) for cb in range(10)]
    def rd(i):
        hf, cb = blk[i]; P.wait_tag(f'x{hf}_{cb}'); P(f'ds_read_b128 {q4(B+4*(i%4))}, v{vrd} offset:{XT + (hf*10+cb)*1024}')
    rd(0); rd(1)
    for i in range(20):
        if i + 2 < 20: rd(i+2)
        hf = blk[i][0]
        for j in range(4):
            r = B + 4*(i % 4) + j
            P(f'v_dot2c_f32_bf16 v{sacc+2*hf}, v{r}, v{ones}'); P(f'v_dot2c_f32_bf16 v{sacc+2*hf+1}, v{r}, v{r}')
    st(P, 's1_x')
    for mod in ('quad_perm:[1,0,3,2]', 'quad_perm:[2,3,0,1]', 'row_half_mirror'):
        for i in range(4): P(f'v_add_f32_dpp v{sacc+i}, v{sacc+i}, v{sacc+i} {mod} row_mask:0xf bank_mask:0xf')
    P(f'v_and_b32 v{t0}, 4, v0'); P(f'v_cmp_eq_u32 vcc, 0, v{t0}')
    P(f'v_cndmask_b32 v{t1}, v{sacc+2}, v{sacc}, vcc'); P(f'v_cndmask_b32 v{t2}, v{sacc+3}, v{sacc+1}, vcc')
    P(f'v_mul_f32 v{t1}, {fl(1/640)}, v{t1}'); P(f'v_mul_f32 v{t2}, {fl(1/640)}, v{t2}')
    P(f'v_fma_f32 v{t2}, -v{t1}, v{t1}, v{t2}'); P(f'v_max_f32 v{t2}, 0, v{t2}')
    P(f'v_cvt_pk_bf16_f32 v{rec}, -v{t1}, -v{t1}')
    P(f'v_cvt_pk_bf16_f32 v{t2}, v{t2}, v{t2}'); P(f'v_and_b32 v{t2}, 0xffff0000, v{t2}'); P(f'v_add_f32 v{t2}, {fl(1e-5)}, v{t2}')
    P(f'v_cvt_pk_bf16_f32 v{t2}, v{t2}, v{t2}'); P(f'v_and_b32 v{t2}, 0xffff0000, v{t2}'); P(f'v_sqrt_f32 v{t2}, v{t2}')
    P(f'v_cvt_pk_bf16_f32 v{t2}, v{t2}, v{t2}'); P(f'v_and_b32 v{t2}, 0xffff0000, v{t2}')
    P(f'v_rcp_f32 v{t3}, v{t2}'); P(f'v_mul_f32 v{rec+2}, v{t2}, v{t2}'); P(f'v_mul_f32 v{rec+1}, {fl(-LOG2E)}, v{t3}'); P(f'v_mov_b32 v{rec+3}, 0')
    P(f'v_lshrrev_b32 v{t1}, 3, v0'); P(f'v_lshl_add_u32 v{t1}, v{t0}, 1, v{t1}'); P(f's_lshl_b32 s{S_T0}, s{S_WAVE}, 4'); P(f'v_add_u32 v{t1}, s{S_T0}, v{t1}')
    P(f'v_lshlrev_b32 v{t0}, 2, v{t1}'); P(f'v_add_u32 v{t0}, {SST}, v{t0}'); P(f'ds_write_b32 v{t0}, v{t3}')
    P(f'v_lshlrev_b32 v{t0}, 1, v{t1}'); P(f'v_add_u32 v{t0}, {SST+256}, v{t0}'); P(f'ds_write_b16 v{t0}, v{rec}')
    P(f'v_lshlrev_b32 v{t0}, 4, v{t1}'); P(f's_lshl_b32 s{S_T0}, s{sG}, 10'); P(f's_add_u32 s{S_T0}, s{S_T0}, {WS_STAT}')
    P(f's_mov_b32 exec_lo, 0x11111111'); P(f's_mov_b32 exec_hi, 0x11111111')
    P(f'buffer_store_dwordx4 {q4(rec)}, v{t0}, s[{R_WS}:{R_WS+3}], s{S_T0} offen sc1', tag='stat')
    P(f's_mov_b64 exec, -1')
    P.wait(lg=0); P('s_barrier')
    RR = B; NM = B + 16; MP = B + 24; MS = B + 40; MU = B + 56; XF = B + 64; AC = B + 80
    P(f'v_lshrrev_b32 v{t0}, 1, v{C.g}'); P(f'v_and_b32 v{t1}, 1, v{C.g}'); P(f'v_lshlrev_b32 v{t0}, 2, v{t0}'); P(f'v_add_lshl_u32 v{t0}, v{t0}, v{t1}, 3')
    P(f'v_lshlrev_b32 v{t1}, 1, v{t0}'); P(f'v_add_u32 v{t1}, {SST}, v{t1}'); P(f'v_add_u32 v{t0}, {SST+256}, v{t0}')
    for ks in range(2):
        for q in range(2):
            P(f'ds_read_b128 {q4(RR+8*ks+4*q)}, v{t1} offset:{(32*ks+8*q)*4}')
            P(f'ds_read_b64 {q2(NM+4*ks+2*q)}, v{t0} offset:{(32*ks+8*q)*2}')
    seg = [(0, 0, 0, 0), (0, 5120, 0, 1), (1, 5120, 1, 0), (1, 0, 1, 1)]
    fr = [(tt, sg, ks) for tt in range(5) for sg in range(4) for ks in range(2)]
    def rdx(i):
        tt, sg, ks = fr[i]; mir, off, _, _ = seg[sg]
        for q in range(2): P(f'ds_read_b64_tr_b16 {q2(XF+4*(i%4)+2*q)}, v{va+2*tt+mir} offset:{XT + off + (4*ks+q)*10240}')
    rdx(0); rdx(1); rdx(2)
    for nt in range(2):
        for i in range(0, 16, 2): P(f'v_pk_mul_f32 {q2(M+16*nt+i)}, {q2(M+16*nt+i)}, {q2(RR+i)}')
        for i in range(8): P(f'v_cvt_pk_bf16_f32 v{MP+8*nt+i}, v{M+16*nt+2*i}, v{M+16*nt+2*i+1}')
        for i in range(8): P(f'v_xor_b32 v{MS+8*nt+i}, s{sSig}, v{MP+8*nt+i}')
    for i, (mm, ks) in enumerate([(MP, 0), (MP, 1), (MS, 0), (MS, 1)]):
        for nt in range(2): P(f'{MF} {q4(MU+4*nt)}, {q4(NM+4*ks)}, {q4(mm+8*nt+4*ks)}, {q4(MU+4*nt) if i else 0}')
    st(P, 's1_mprep')
    AC2 = M
    TM = M + 16
    fillq = []
    def epi(tt):
        ac = AC if tt % 2 == 0 else AC2; ops = []
        for nt in range(2):
            a1 = ac + 4*nt; a2 = ac + 8 + 4*nt; tm = TM + 8*nt
            for r in range(4): ops.append(f'v_add_f32 v{tm+r}, v{a1+r}, v{a2+3-r}')
            for r in range(4): ops.append(f'v_sub_f32 v{tm+4+r}, v{a1+r}, v{a2+3-r}')
            for r in range(4): ops.append(f'v_cvt_pk_bf16_f32 v{tm+r}, v{tm+2*r}, v{tm+2*r+1}')
            for ty in range(2): ops.append(f'ds_write_b64 v{stw2 if tt & 1 else C.stw}, {q2(tm+2*ty)} offset:{nt*16*ROWP + ty*320 + (tt>>1)*64}')
        return ops
    for i, (tt, sg, ks) in enumerate(fr):
        mir, off, acc, sig = seg[sg]; ac = (AC if tt % 2 == 0 else AC2) + 8*acc
        first = (sg in (0, 2) and ks == 0)
        for nt in range(2):
            P(f'{MF} {q4(ac+4*nt)}, {q4(XF+4*(i%4))}, {q4((MS if sig else MP)+8*nt+4*ks)}, {q4(MU+4*nt) if first else q4(ac+4*nt)}')
        if i + 3 < len(fr): rdx(i+3)
        if i % 8 == 1 and tt: fillq += epi(tt-1)
        for _ in range(5):
            if fillq: P(fillq.pop(0))
    assert not fillq
    for op in epi(4): P(op)
    P(f'v_mul_u32_u24 v{t0}, 81920, v{C.g}'); P(f'v_bfe_u32 v{t1}, v0, 3, 1'); P(f'v_mul_u32_u24 v{t1}, 20480, v{t1}'); P(f'v_and_b32 v{t2}, 7, v0')
    P(f'v_add_u32 v{t0}, v{t0}, v{t1}'); P(f'v_lshl_add_u32 v{t0}, v{t2}, 4, v{t0}')
    P(f's_mul_i32 s{sO1}, s{S_WAVE}, {8*81920}'); P(f's_mul_i32 s{S_T0}, s{sP}, 40960'); P(f's_mul_i32 s{S_T1}, s{sG}, 640')
    P(f's_add_u32 s{sO1}, s{sO1}, s{S_T0}'); P(f's_add_u32 s{sO1}, s{sO1}, s{S_T1}'); P(f's_add_u32 s{sO1}, s{sO1}, {WS_T}')
    P.wait(lg=0); P('s_barrier')
    st(P, 's1_dft')
    stage_out(P, C, t0, sO1, 4*81920, B, 'T')
    st(P, 's1_stored')
    V.release(mk)

F1A = 0; F2A = 120; A2A = 0
WR = 128
def gen_f(P, C, which, B):
    t0, t1, t2, t3 = C.t0, C.t1, C.t2, C.t3
    base = F1A if which == 1 else F2A
    dl, ph, tw = B, B+1, B+2
    X = B + 4
    PK = B + 28
    if which == 2:
        P(f'v_cmp_eq_u32 vcc, 3, v{C.g}'); P(f's_lshl_b32 s{S_T0}, s{sP}, 23'); P(f's_add_u32 s{S_T0}, s{S_T0}, 0x3f000000')
        P(f'v_mov_b32 v{t3}, s{S_T0}'); P(f'v_cndmask_b32 v{t3}, 1.0, v{t3}, vcc')
    for tk in range(3):
        P(f's_add_u32 s{S_T0}, s{sTb}, {tk}'); P(f's_lshl_b32 s{S_T0}, s{S_T0}, 4'); P(f'v_add_u32 v{t0}, s{S_T0}, v{C.n}')
        if which == 1:
            P(f'v_lshl_add_u32 v{t0}, v{t0}, 1, s{sK0}'); P(f'v_cvt_f32_u32 v{t0}, v{t0}'); P(f'v_mul_f32 v{dl}, {fl(1/640)}, v{t0}')
            P(f'v_add_f32 v{t1}, 0.5, v{C.g4f}'); P(f'v_mul_f32 v{ph}, v{dl}, v{t1}')
        else:
            P(f'v_cvt_f32_u32 v{t0}, v{t0}'); P(f'v_add_f32 v{t0}, 0.5, v{t0}'); P(f'v_mul_f32 v{dl}, {fl(1/320)}, v{t0}')
            P(f'v_cvt_f32_u32 v{t1}, s{sK0}'); P(f'v_fma_f32 v{t1}, v{t1}, 0.5, v{C.g4f}'); P(f'v_mul_f32 v{ph}, v{dl}, v{t1}')
        P(f'v_mul_f32 v{t2}, {fl(16.0)}, v{dl}'); P(f'v_cos_f32 v{t2}, v{t2}')
        for u in range(10):
            x = X + 8*(u % 3)
            if u < 2:
                for i in range(4): P(f'v_fmamk_f32 v{x+4+i}, v{dl}, {fl(float(16*u+i))}, v{ph}')
                for i in range(4): P(f'v_cos_f32 v{x+i}, v{x+4+i}')
                for i in range(4): P(f'v_sin_f32_e64 v{x+4+i}, -v{x+4+i}')
                if u == 0: P(f'v_add_f32 v{tw}, v{t2}, v{t2}'); P(f'v_add_f32 v{tw+1}, v{t2}, v{t2}')
                if which == 2:
                    for i in range(8): P(f'v_mul_f32 v{x+i}, {fl(2/640)}, v{x+i}')
            else:
                x1 = X + 8*((u-1) % 3); x2 = X + 8*((u-2) % 3)
                for i in range(0, 8, 2): P(f'v_pk_fma_f32 {q2(x+i)}, {q2(tw)}, {q2(x1+i)}, {q2(x2+i)} neg_lo:[0,0,1] neg_hi:[0,0,1]')
            if which == 2 and u == 9:
                P(f'v_mul_f32 v{x+3}, v{x+3}, v{t3}'); P(f'v_mul_f32 v{x+7}, v{x+7}, v{t3}')
            pk = PK + 4*(u & 1)
            for i in range(4): P(f'v_cvt_pk_bf16_f32 v{pk+i}, v{x+2*i}, v{x+2*i+1}')
            for i in range(4):
                ty = i >> 1
                P(f'v_accvgpr_write_b32 a{base + ((ty*3+tk)*5 + (u>>1))*4 + 2*(u&1) + (i&1)}, v{pk+i}')

def mid_consts(P, C):
    P(f's_cmp_eq_u32 s{sG}, 0'); P(f's_cselect_b32 s{sFs}, 32, 64'); P(f's_cselect_b32 s{sG0}, 0xffff, 0'); P(f's_mov_b32 s{sG0+1}, 0')

def gen_a2(P, C, B):
    t0, t1, t2, t3 = C.t0, C.t1, C.t2, C.t3
    X = B; PK = B + 8; F = B + 12; O = B + 13; MK = B + 14; AD = B + 15
    P(f's_lshl_b32 s{S_T0}, s{S_WAVE}, 11'); P(f's_add_u32 s{S_T0}, s{S_T0}, {A2B}'); P(f'v_add_u32 v{AD}, s{S_T0}, v{C.lin}')
    P(f's_lshr_b32 s{S_T2}, s{S_WAVE}, 1'); P(f's_and_b32 s{S_T1}, s{S_WAVE}, 1'); P(f's_lshl_b32 s{S_T1}, s{S_T1}, 4')
    P(f'v_add_u32 v{t0}, s{S_T1}, v{C.n}')
    P(f'v_cvt_f32_u32 v{t3}, s{S_T2}'); P(f'v_mul_f32 v{t3}, {fl(0.25)}, v{t3}')
    P(f's_cmp_eq_u32 s{sG}, 0'); P(f's_cselect_b32 s{S_T3}, 0, {fl(0.25)}')
    def frag(idx, andmask):
        for j in range(8): P(f'v_fmamk_f32 v{X+j}, v{F}, {fl(float(16*(j>>2)+(j&3)))}, v{O}')
        if idx == 9: P(f'v_cndmask_b32 v{X}, v{X}, v{t1}, s[{sG0}:{sG0+1}]')
        for j in range(8): P(f'v_cos_f32 v{X+j}, v{X+j}')
        for j in range(4): P(f'v_cvt_pk_bf16_f32 v{PK+j}, v{X+2*j}, v{X+2*j+1}')
        for j in range(4): P(f'v_and_b32 v{PK+j}, {andmask}, v{PK+j}')
        P(f'ds_write_b128 v{AD}, {q4(PK)} offset:{(idx & 1)*1024 + (idx >> 3)*8192}')
    P(f'v_mul_u32_u24 v{t1}, s{sFs}, v{t0}'); P(f'v_add_u32 v{t1}, s{sG}, v{t1}')
    P(f'v_cmp_eq_u32 vcc, 0, v{t1}'); P(f's_lshl_b32 s{S_T0}, s{S_T2}, 10'); P(f'v_mov_b32 v{t2}, s{S_T0}')
    P(f'v_cndmask_b32 v{t1}, v{t1}, v{t2}, vcc'); P(f'v_cndmask_b32 v{t2}, v{t3}, 0, vcc')
    P(f'v_cvt_f32_u32 v{t1}, v{t1}'); P(f'v_mul_f32 v{F}, {fl(1/2048)}, v{t1}')
    P(f'v_fma_f32 v{O}, v{F}, v{C.g4f}, -v{t2}')
    P(f's_cmp_eq_u32 s{sG}, 0'); P(f's_cselect_b32 s{S_T0}, 0, -1')
    P(f'v_and_b32 v{MK}, 1, v{t0}'); P(f'v_add_u32 v{MK}, -1, v{MK}')
    P(f'v_not_b32 v{t1}, v{MK}'); P(f'v_or_b32 v{MK}, s{S_T0}, v{MK}')
    frag(0, f'v{MK}')
    P(f'v_or_b32 v{MK}, s{S_T0}, v{t1}'); P(f'v_add_f32 v{O}, s{S_T3}, v{O}')
    frag(1, f'v{MK}')
    P(f'v_cvt_f32_u32 v{t0}, v{t0}'); P(f'v_mul_f32 v{t1}, 0.5, v{t0}'); P(f'v_mul_f32 v{t0}, {fl(1/2048)}, v{t0}')
    P(f'v_cvt_f32_u32 v{F}, s{sFs}'); P(f'v_mul_f32 v{F}, v{F}, v{t0}')
    P(f'v_cvt_f32_u32 v{O}, s{sG}'); P(f'v_mul_f32 v{O}, v{O}, v{t0}'); P(f'v_fmac_f32 v{O}, v{F}, v{C.g4f}')
    P(f'v_mul_f32 v{t3}, 4.0, v{t3}'); P(f'v_fmac_f32 v{O}, s{S_T3}, v{t3}')
    P(f's_lshl_b32 s{S_T1}, s{S_T2}, 4'); P(f's_lshl_b32 s{sMask}, 0xffff, s{S_T1}'); P(f's_or_b32 s{sMask}, s{sMask}, s{S_T0}')
    frag(8, f's{sMask}')
    P(f'v_add_f32 v{O}, {fl(-0.25)}, v{O}')
    frag(9, f's{sMask}')

def mid_wload(P, C):
    V = C.V; t0, t1, t2 = C.t0, C.t1, C.t2
    srd(P, R_A, P_WR, WFB); srd(P, R_B, P_WI, WFB)
    vp, vn, vn0 = V(), V(), V()
    P(f's_mul_i32 s{S_T0}, s{sFs}, 642')
    for i, x in enumerate([0, 1, 2, 3, 16, 17, 18, 19]): P(f's_mul_i32 s{sW+i}, s{S_T0}, {x}')
    P(f's_lshl_b32 s{S_T1}, s{sTb}, 5'); P(f's_add_u32 s{S_T1}, s{S_T1}, s{sK0}'); P(f's_lshl_b32 s{S_T1}, s{S_T1}, 1')
    P(f'v_lshl_add_u32 v{t0}, v{C.n}, 2, s{S_T1}')
    P(f's_lshl_b32 s{S_T0}, s{S_T0}, 2'); P(f'v_mul_u32_u24 v{t1}, s{S_T0}, v{C.g}')
    P(f's_mul_i32 s{S_T1}, s{sG}, 642'); P(f'v_add3_u32 v{vp}, v{t0}, v{t1}, s{S_T1}')
    P(f's_sub_u32 s{S_T1}, {2048*642}, s{S_T1}'); P(f's_sub_u32 s{S_T1}, s{S_T1}, s{sW+7}')
    P(f'v_sub_u32 v{vn}, v{t0}, v{t1}'); P(f'v_add_u32 v{vn}, s{S_T1}, v{vn}')
    P(f'v_subrev_u32 v{t0}, {1024*642}, v{vn}'); P(f'v_cndmask_b32 v{vn0}, v{vn}, v{t0}, s[{sG0}:{sG0+1}]')
    for i in range(96): P(f'v_mov_b32 v{WR+i}, 0')
    ops = []
    for x in range(8):
        for c in range(4):
            for tk in range(3):
                R = R_A if c % 2 == 0 else R_B
                vo = vp if c < 2 else (vn0 if x == 0 else vn); so = sW + (x if c < 2 else 7 - x)
                ops.append(f'buffer_load_short_d16_hi v{WR + tk*32 + c*8 + x}, v{vo}, s[{R}:{R+3}], s{so} offen offset:{tk*64}')
    return ops

def mid_issue(P, C):
    V = C.V; t0, t1, t2 = C.t0, C.t1, C.t2
    P(f'v_lshrrev_b32 v{t0}, 3, v0'); P(f'v_and_b32 v{t1}, 7, v0'); P(f'v_xor_b32 v{t1}, v{t1}, v{C.g}')
    P(f'v_mul_u32_u24 v{t0}, 640, v{t0}'); P(f'v_lshl_add_u32 v{t0}, v{t1}, 4, v{t0}'); P(f'v_xor_b32 v{t1}, 64, v{t0}')
    P(f's_lshl_b32 s{S_T0}, s{sG}, 1'); P(f's_add_u32 s{S_T0}, s{S_T0}, s{sP}'); P(f's_lshl_b32 s{S_T0}, s{S_T0}, 2'); P(f's_add_u32 s{S_T0}, s{S_T0}, s{S_WAVE}')
    P(f's_mul_i32 s{sO1}, s{S_T0}, 10240'); P(f's_add_u32 s{sO1}, s{sO1}, {WS_T}')
    P(f's_mul_i32 s{S_T1}, s{S_WAVE}, 10240')
    for hf in range(2):
        for c in range(5):
            P(f's_add_u32 m0, s{S_T1}, {XT + (hf*5+c)*1024 - c*128}')
            P(f'buffer_load_dwordx4 v{t1 if hf else t0}, s[{R_WS}:{R_WS+3}], s{sO1} offen offset:{c*128} sc1 lds', tag='X')
        if hf == 0: P(f's_add_u32 s{sO1}, s{sO1}, 5120')

def mid_main(P, C, st):
    V = C.V; t0, t1, t2, t3 = C.t0, C.t1, C.t2, C.t3
    vx = V(2); vz = V(3); vzr = V(); vy = V(2)
    Y = V(48); XF = V(16); TM = V(16)
    AC = 224
    P(f'v_and_b32 v{t0}, 7, v0'); P(f'v_lshlrev_b32 v{t0}, 7, v{t0}'); P(f'v_bfe_u32 v{t1}, v0, 3, 1'); P(f'v_mul_u32_u24 v{t1}, 5120, v{t1}')
    P(f'v_bfe_u32 v{t2}, v0, 1, 3'); P(f'v_xor_b32 v{t2}, v{t2}, v{C.g}'); P(f'v_lshlrev_b32 v{t2}, 4, v{t2}'); P(f'v_add3_u32 v{vx}, v{t0}, v{t1}, v{t2}')
    P(f'v_xor_b32 v{vx+1}, 64, v{vx}')
    for tk in range(3):
        P(f's_add_u32 s{S_T0}, s{sTb}, {tk}'); P(f's_and_b32 s{S_T1}, s{S_T0}, 1'); P(f's_lshr_b32 s{S_T0}, s{S_T0}, 1')
        P(f's_lshl_b32 s{S_T0}, s{S_T0}, 10'); P(f's_lshl_b32 s{S_T1}, s{S_T1}, 3'); P(f's_add_u32 s{S_T0}, s{S_T0}, s{S_T1}'); P(f's_add_u32 s{S_T0}, s{S_T0}, {ZB}')
        P(f'v_add_u32 v{vz+tk}, s{S_T0}, v{C.lin}')
    P(f'v_add_u32 v{vzr}, {ZB}, v{C.lin}')
    P(f'v_mul_u32_u24 v{t0}, {ROWP}, v{C.n}'); P(f'v_lshlrev_b32 v{t1}, 3, v{C.g}'); P(f's_lshl_b32 s{S_T0}, s{sTb}, 5')
    P(f's_add_u32 s{S_T1}, s{S_T0}, {STG}'); P(f'v_add3_u32 v{vy}, v{t0}, v{t1}, s{S_T1}')
    P(f's_sub_u32 s{S_T1}, {STG + 632 - 64}, s{S_T0}'); P(f'v_sub_u32 v{t0}, v{t0}, v{t1}'); P(f'v_add_u32 v{vy+1}, s{S_T1}, v{t0}')
    P(f'v_add_u32 v{t3}, {A2B}, v{C.lin}')
    P.wait_tag('X'); P.wait(lg=0); P('s_barrier')
    st(P, 'mid_x')
    fr = [(ty, rt, ks) for ty in range(2) for rt in range(4) for ks in range(5)]
    def rdx(i):
        ty, rt, ks = fr[i]; sg = 5*ty + ks
        P(f'ds_read_b128 {q4(XF+4*(i%4))}, v{vx+(sg&1)} offset:{XT + (10*rt + (sg>>1))*1024}')
    rdx(0); rdx(1); rdx(2)
    fillq = []
    def cvt1(ty, rt):
        ac = AC + 12*(rt & 1)
        return [f'v_cvt_pk_bf16_f32 v{Y + (tk*2+ty)*8 + 2*rt + h}, v{ac+4*tk+2*h}, v{ac+4*tk+2*h+1}' for tk in range(3) for h in range(2)]
    for i, (ty, rt, ks) in enumerate(fr):
        ac = AC + 12*(rt & 1)
        for tk in range(3):
            P(f'{MF} {q4(ac+4*tk)}, {q4(XF+4*(i%4))}, {q4(F1A+((ty*3+tk)*5+ks)*4, "a")}, {q4(ac+4*tk) if ks else 0}')
        if i + 3 < len(fr): rdx(i+3)
        if ks == 1 and i > 1: fillq += cvt1(*fr[i-5][:2])
        for _ in range(2):
            if fillq: P(fillq.pop(0))
        if i >= 24 and i < 32: P(f'ds_read_b128 {q4(A2A+4*(i-24), "a")}, v{t3} offset:{(i-24)*1024}')
        if i >= 32 and i < 39: P(f'ds_read_b128 {q4(A2A+4*(i-24), "a")}, v{t3} offset:{(i-24)*1024}')
    P(f'ds_read_b128 {q4(A2A+60, "a")}, v{t3} offset:{15*1024}')
    for op in cvt1(1, 3): P(op)
    st(P, 'mid_i')
    def w(tk, c, x): return WR + tk*32 + c*8 + x
    for tk in range(3):
        for ks in range(2):
            for ty in range(2):
                for mt in range(4):
                    ac = AC + 16*ty + 4*mt
                    P(f'{MF} {q4(ac)}, {q4(A2A+(2*mt+ks)*4, "a")}, {q4(Y+(tk*2+ty)*8+4*ks)}, {q4(ac) if ks else 0}')
        BP = Y + tk*16
        for x in range(0, 8, 2):
            cr, ci, sr, si = AC + x, AC + 16 + x, AC + 8 + x, AC + 24 + x
            pr, pi_, nr, ni = (q2(w(tk, c, x)) for c in range(4))
            fpr, fpi, fnr, fni, gpr, gpi, gnr, gni = (q2(TM + 2*i) for i in range(8))
            if x == 0:
                sp = XF
                P(f'v_mul_f32 v{sp}, v{cr}, v{w(tk,0,0)}'); P(f'v_mul_f32 v{sp+1}, v{cr}, v{w(tk,1,0)}')
                P(f'v_mul_f32 v{sp+2}, v{sr}, v{w(tk,2,0)}'); P(f'v_mul_f32 v{sp+3}, v{sr}, v{w(tk,3,0)}')
                P(f'v_fma_f32 v{sp}, -v{ci}, v{w(tk,1,0)}, v{sp}'); P(f'v_fma_f32 v{sp+1}, v{ci}, v{w(tk,0,0)}, v{sp+1}')
                P(f'v_fma_f32 v{sp+2}, -v{si}, v{w(tk,3,0)}, v{sp+2}'); P(f'v_fma_f32 v{sp+3}, v{si}, v{w(tk,2,0)}, v{sp+3}')
            N1 = 'neg_lo:[0,1] neg_hi:[0,1]'
            P(f'v_pk_add_f32 {fpr}, {q2(cr)}, {q2(si)}'); P(f'v_pk_add_f32 {fpi}, {q2(ci)}, {q2(sr)} {N1}')
            P(f'v_pk_add_f32 {fnr}, {q2(cr)}, {q2(si)} {N1}'); P(f'v_pk_add_f32 {fni}, {q2(ci)}, {q2(sr)}')
            P(f'v_pk_mul_f32 {gpr}, {fpr}, {pr}'); P(f'v_pk_mul_f32 {gpi}, {fpr}, {pi_}')
            P(f'v_pk_mul_f32 {gnr}, {fnr}, {nr}'); P(f'v_pk_mul_f32 {gni}, {fnr}, {ni}')
            N0 = 'neg_lo:[1,0,0] neg_hi:[1,0,0]'
            P(f'v_pk_fma_f32 {gpr}, {fpi}, {pi_}, {gpr} {N0}'); P(f'v_pk_fma_f32 {gpi}, {fpi}, {pr}, {gpi}')
            P(f'v_pk_fma_f32 {gnr}, {fni}, {ni}, {gnr} {N0}'); P(f'v_pk_fma_f32 {gni}, {fni}, {nr}, {gni}')
            P(f'v_pk_add_f32 {fpr}, {gpr}, {gnr}'); P(f'v_pk_add_f32 {fpi}, {gpi}, {gni}')
            P(f'v_pk_add_f32 {fnr}, {gni}, {gpi} {N1}'); P(f'v_pk_add_f32 {fni}, {gpr}, {gnr} {N1}')
            if x == 0:
                for i in range(4): P(f'v_cndmask_b32 v{TM+2*i}, v{TM+2*i}, v{XF+i}, s[{sG0}:{sG0+1}]')
            for i, (ty, cs) in enumerate([(0, 0), (1, 0), (0, 1), (1, 1)]):
                P(f'v_cvt_pk_bf16_f32 v{BP + ty*8 + cs*4 + x//2}, v{TM+2*i}, v{TM+2*i+1}')
        for cs in range(2):
            for ty in range(2):
                for nt in range(4):
                    ac = AC + 16*ty + 4*nt
                    P(f'{MF} {q4(ac)}, {q4(BP+ty*8+cs*4)}, {q4(A2A+32+(2*nt+cs)*4, "a")}, {q4(ac) if cs else 0}')
        for ty in range(2):
            for nt in range(4):
                ac = AC + 16*ty + 4*nt; tm = TM + 2*(4*ty+nt)
                P(f'v_cvt_pk_bf16_f32 v{tm}, v{ac}, v{ac+1}'); P(f'v_cvt_pk_bf16_f32 v{tm+1}, v{ac+2}, v{ac+3}')
                P(f'ds_write_b64 v{vz+tk}, {q2(tm)} offset:{(ty*4+nt)*5120}')
    P.wait(lg=0); P('s_barrier')
    st(P, 'mid_iii')
    fr = [(nt, ty, ks) for nt in range(4) for ty in range(2) for ks in range(5)]
    def rdz(i):
        nt, ty, ks = fr[i]
        P(f'ds_read_b128 {q4(XF+4*(i%4))}, v{vzr} offset:{(ty*4+nt)*5120 + ks*1024}')
    rdz(0); rdz(1); rdz(2)
    A4 = WR
    def epi(nt):
        ac = A4 + 24*(nt & 1); ops = []
        for td in range(3):
            e = ac + 4*td; o = ac + 12 + 4*td; tm = TM + 8*(td & 1)
            for r in range(4): ops.append(f'v_add_f32 v{tm+r}, v{e+r}, v{o+r}')
            for r in range(4): ops.append(f'v_sub_f32 v{tm+7-r}, v{e+r}, v{o+r}')
            for r in range(4): ops.append(f'v_cvt_pk_bf16_f32 v{tm+r}, v{tm+2*r}, v{tm+2*r+1}')
            for r in range(2): ops.append(f'v_xor_b32 v{tm+2+r}, s{sSig}, v{tm+2+r}')
            ops.append(f'ds_write_b64 v{vy}, {q2(tm)} offset:{nt*16*ROWP + td*32}')
            ops.append(f'ds_write_b64 v{vy+1}, {q2(tm+2)} offset:{nt*16*ROWP + (2-td)*32}')
        return ops
    for i, (nt, ty, ks) in enumerate(fr):
        ac = A4 + 24*(nt & 1) + 12*ty
        for td in range(3):
            P(f'{MF} {q4(ac+4*td)}, {q4(F2A+((ty*3+td)*5+ks)*4, "a")}, {q4(XF+4*(i%4))}, {q4(ac+4*td) if ks else 0}')
        if i + 3 < len(fr): rdz(i+3)
        if i % 10 == 1 and nt: fillq += epi(nt-1)
        for _ in range(6):
            if fillq: P(fillq.pop(0))
    assert not fillq
    for op in epi(3): P(op)
    P(f'v_lshrrev_b32 v{t0}, 3, v0'); P(f'v_mul_u32_u24 v{t0}, 81920, v{t0}'); P(f'v_and_b32 v{t2}, 7, v0'); P(f'v_lshl_add_u32 v{t0}, v{t2}, 4, v{t0}')
    P(f's_and_b32 s{S_T0}, s{S_WAVE}, 1'); P(f's_mul_i32 s{sO1}, s{S_T0}, {16*81920}'); P(f's_mul_i32 s{S_T0}, s{sP}, 40960'); P(f's_add_u32 s{sO1}, s{sO1}, s{S_T0}')
    P(f's_lshr_b32 s{S_T0}, s{S_WAVE}, 1'); P(f's_lshl_b32 s{S_T1}, s{sG}, 1'); P(f's_add_u32 s{S_T0}, s{S_T0}, s{S_T1}'); P(f's_mul_i32 s{S_T0}, s{S_T0}, 640')
    P(f's_add_u32 s{sO1}, s{sO1}, s{S_T0}'); P(f's_add_u32 s{sO1}, s{sO1}, {WS_V}')
    P.wait(lg=0); P('s_barrier')
    st(P, 'mid_iv')
    stage_out(P, C, t0, sO1, 8*81920, Y, 'V')
    st(P, 'mid_stored')

def role_s1(P, st):
    C = spec_setup(P)
    s1_issue(P, C); s1_genm(P, C, 224)
    st(P, 's1_gen')
    s1_main(P, C, st, 224, 128)
def role_mid(P, st):
    C = spec_setup(P); mid_consts(P, C)
    mid_issue(P, C)
    for op in mid_wload(P, C): P(op)
    st(P, 'mid_issued')
    gen_f(P, C, 1, 64); gen_a2(P, C, 64); gen_f(P, C, 2, 64)
    st(P, 'mid_gen')
    mid_main(P, C, st)
```

```python
import sys, json
from common import *
from asmlib import kernel_text, file_text, assemble
import g1, g2, spec
ROLES = {'g1': (g1.role_g1, 0, 24, 0), 'g2': (g2.role_g2, 0, 20, 0x40000), 's1': (spec.role_s1, 24, 32, 0x80000), 'mid': (spec.role_mid, 24, 32, 0)}
def build(diag, which, out, header=''):
    ks = []; ls = []; names = {}
    for kn in which:
        roles = kn.split('+'); n = '_'.join(roles) + '_kernel'
        P = Prog(); prologue(P, n)
        for r in roles:
            f, lo, hi, sb = ROLES[r]
            P(f's_sub_u32 s{S_T0}, s{S_R}, {lo}'); P(f's_cmp_lt_u32 s{S_T0}, {hi-lo}'); P(f's_cbranch_scc1 {n}_{r}')
        P('s_endpgm')
        for r in roles:
            f, lo, hi, sb = ROLES[r]
            st = Stamper(diag, 127)
            P.raw('.p2align 6'); P(f'{n}_{r}:'); P.hist = []
            st(P, 'start'); f(P, st)
            if diag: P.wait_all(); st(P, 'end'); st.flush(P, 1, sb)
            P('s_endpgm'); P.vm = []; P.lg = []
            names[r] = st.names
        print(n, P.count, 'nops', P.nops)
        ks.append(kernel_text(n, P.text(), vgpr=256, agpr=256)); ls.append((n, 256, 256, 163840))
    t = file_text(ls, ks, header)
    open(out + '.s', 'w').write(t); assemble(out + '.s', out + '.co')
    json.dump(names, open(out + '.json', 'w'))
if __name__ == '__main__':
    build(int(sys.argv[1]), sys.argv[2].split(','), sys.argv[3])
```

```python
from common import *
from asmlib import kernel_text, assemble
base = open('v1.s').read()
lines = base.split('\n'); L = lines[:3]; rest = '\n'.join(lines[3:])
nop = kernel_text('nop_kernel', '    s_endpgm\n', vgpr=8)
NL = '; @launch kernel=nop_kernel grid=(256,1,1) block=(64,1,1) lds=0'
P = Prog(); prologue(P, 'pf_kernel')
P('v_lshlrev_b32 v1, 6, v1'); P('v_add_u32 v1, v1, v0'); P('v_lshlrev_b32 v1, 4, v1')
k = 0
for ptr, nb in ((P_X, XB), (P_WG, WGB), (P_WU, WGB), (P_WD, WDB), (P_WR, WFB), (P_WI, WFB)):
    srd(P, R_A, ptr, nb); per = nb // 256
    P(f's_mul_i32 s{S_T0}, s2, {per}')
    for i in range((per + 4095)//4096):
        P(f'buffer_load_dwordx4 v[{4+4*k}:{7+4*k}], v1, s[{R_A}:{R_A+3}], s{S_T0} offen'); P(f's_add_u32 s{S_T0}, s{S_T0}, 4096'); k += 1
P.wait_all(); P('s_endpgm')
pf = kernel_text('pf_kernel', P.text(), vgpr=64)
PL = '; @launch kernel=pf_kernel grid=(256,1,1) block=(256,1,1) lds=0'
def w(n, ls, extra):
    open(n+'.s','w').write('\n'.join(ls) + '\n' + rest + '\n' + extra); assemble(n+'.s', n+'.co')
w('vB', L + [NL]*4, nop)
w('vC', [PL] + L, pf)
w('vD', L + L, '')
w('vE', [NL]*4 + L, nop)
w('vF', [PL, PL] + L, pf)
```

```python
from common import *
from asmlib import kernel_text, assemble
base = open('v1.s').read()
lines = base.split('\n'); L = lines[:3]; rest = '\n'.join(lines[3:])
P = Prog(); prologue(P, 'stamp_kernel', 1)
P('s_memrealtime s[60:61]'); P.wait(lg=0); P('v_mov_b32 v2, s60'); P('v_mov_b32 v3, 0')
P(f'buffer_store_dword v2, v3, s[{R_WS}:{R_WS+3}], 0 offen'); P('s_endpgm')
stamp = kernel_text('stamp_kernel', P.text(), vgpr=8)
P = Prog(); prologue(P, 'wait_kernel', 1)
P('v_mov_b32 v3, 0'); P(f'buffer_load_dword v2, v3, s[{R_WS}:{R_WS+3}], 0 offen'); P('v_readfirstlane_b32 s62, v2'); P('s_mov_b32 s63, 0')
P('wl:'); P('s_memrealtime s[60:61]'); P.wait(lg=0); P('s_sub_u32 s60, s60, s62'); P('s_add_u32 s63, s63, 1'); P('s_cmp_gt_u32 s63, 20000'); P('s_cbranch_scc1 wd')
P('s_cmp_lt_u32 s60, 8000'); P('s_cbranch_scc1 wl'); P('wd:'); P('s_endpgm')
wait = kernel_text('wait_kernel', P.text(), vgpr=8)
SL = '; @launch kernel=stamp_kernel grid=(1,1,1) block=(64,1,1) lds=0'
WL = '; @launch kernel=wait_kernel grid=(1,1,1) block=(64,1,1) lds=0'
def w(n, ls, extra):
    open(n+'.s','w').write('\n'.join(ls) + '\n' + rest + '\n' + extra); assemble(n+'.s', n+'.co')
w('wA', [SL] + L + [WL], stamp+wait)
w('wB', [SL, L[0], L[1], WL, L[2]], stamp+wait)
w('wC', [SL, L[0], WL, L[1], L[2]], stamp+wait)
w('wD', [SL, WL] + L, stamp+wait)
w('wE', [SL] + L, stamp)
```

```python
from prog import *
import os
OPT = dict(kv.split('=') if '=' in kv else (kv, '1') for kv in os.environ.get('OPT', '').split(',') if kv)
def opt(k, d): return type(d)(OPT.get(k, d))
WS_GEN = 0x0
WS_STAT = 0x10000
WS_FT = 0x20000
WS_FV = 0x28000
WS_FH = 0x30000
WS_T = 0x100000
WS_V = 0x400000
WS_H = 0x700000
WS_STAMP = 0xD00000
WS_SIZE = 0xE00000
XB = 2048*1280; WGB = 640*3072; WDB = 1536*1280; WFB = 2048*642
S_WAVE = 3
P_X, P_WR, P_WI, P_WG, P_WU, P_WD, P_OUT, P_DBG, P_WS = 4, 6, 8, 12, 14, 16, 18, 20, 22
R_X, R_WS, R_A, R_B, R_C, R_D = 24, 28, 32, 36, 40, 44
S_XCD, S_R = 48, 49
S_T0, S_T1, S_T2, S_T3 = 50, 51, 52, 53
S_NONCE, S_SPIN = 54, 55
S_FREE = 56
S_STAMP = 96
LOG2E = 1.4426950408889634
SPIN_MAX = 1 << 16
import struct
def f2u(x): return struct.unpack('<I', struct.pack('<f', x))[0]
def fl(x): return hex(f2u(x))
def q4(r, k='v'): return f'{k}[{r}:{r+3}]'
def q2(r, k='v'): return f'{k}[{r}:{r+1}]'
def rs(r): return f's[{r}:{r+3}]'

def srd(P, r, ptr, nbytes, back=0):
    if back:
        P(f's_sub_u32 s{r}, s{ptr}, {back}'); P(f's_subb_u32 s{r+1}, s{ptr+1}, 0')
    else:
        P(f's_mov_b32 s{r}, s{ptr}'); P(f's_mov_b32 s{r+1}, s{ptr+1}')
    P(f's_mov_b32 s{r+2}, {nbytes+back}'); P(f's_mov_b32 s{r+3}, 0x20000')

def prologue(P, name, nwg=256, fused=False, code_end=None):
    P(f's_cmp_lt_u32 s2, {nwg}'); P(f's_cbranch_scc1 {name}_go'); P('s_endpgm'); P(f'{name}_go:')
    P('s_load_dwordx16 s[4:19], s[0:1], 0'); P('s_load_dwordx4 s[20:23], s[0:1], 64')
    P(f's_and_b32 s{S_XCD}, s2, 7'); P(f's_lshr_b32 s{S_R}, s2, 3')
    P('v_lshrrev_b32 v1, 6, v0'); P(f'v_readfirstlane_b32 s{S_WAVE}, v1')
    P('v_and_b32 v0, 63, v0')
    if fused and opt('cpf', 1):
        P(f's_cmp_lg_u32 s{S_WAVE}, 0'); P(f's_cbranch_scc1 {name}_nocpf')
        P('s_getpc_b64 s[60:61]'); P(f'{name}_pc:')
        P(f's_and_b32 s{S_T0}, s{S_R}, 7'); P(f's_lshl_b32 s{S_T0}, s{S_T0}, 13')
        P(f'v_lshl_add_u32 v2, v0, 7, s{S_T0}'); P(f'v_min_u32 v2, {code_end}-{name}_pc-4, v2')
        P('v_mov_b32 v3, s61'); P('v_add_co_u32 v2, vcc, s60, v2'); P('v_addc_co_u32 v3, vcc, 0, v3, vcc')
        P('global_load_dword v125, v[2:3], off')
        P(f'{name}_nocpf:')
    P.wait(lg=0)
    if fused: P(f's_load_dword s{S_NONCE}, s[{P_WS}:{P_WS+1}], {WS_GEN}')
    srd(P, R_X, P_X, XB); srd(P, R_WS, P_WS, WS_SIZE)
    if fused and opt('dpf', 1):
        P(f's_lshl_b32 s{S_T0}, s2, 2'); P(f's_add_u32 s{S_T0}, s{S_T0}, s{S_WAVE}')
        P(f's_mov_b64 s[{R_A}:{R_A+1}], s[{P_X}:{P_X+1}]'); P(f's_mov_b32 s{R_A+2}, {XB}'); P(f's_mov_b32 s{R_A+3}, 0x20000'); P(f's_mov_b32 s{S_T1}, s{S_T0}')
        for lo, ptr in ((320, P_WG), (560, P_WU), (800, P_WD)):
            P(f's_sub_u32 s{S_T2}, s{S_T0}, {lo}'); P(f's_cmp_ge_u32 s{S_T0}, {lo}')
            P(f's_cselect_b64 s[{R_A}:{R_A+1}], s[{ptr}:{ptr+1}], s[{R_A}:{R_A+1}]'); P(f's_cselect_b32 s{R_A+2}, {WGB}, s{R_A+2}'); P(f's_cselect_b32 s{S_T1}, s{S_T2}, s{S_T1}')
        P(f's_lshl_b32 s{S_T1}, s{S_T1}, 13'); P('v_lshlrev_b32 v2, 7, v0')
        P(f'buffer_load_dword v126, v2, {rs(R_A)}, s{S_T1} offen')

def nonce(P):
    P.wait(lg=0)
    P(f's_mul_i32 s{S_NONCE}, s{S_NONCE}, 0x9E3779B1'); P(f's_add_u32 s{S_NONCE}, s{S_NONCE}, 0x7F4A7C15')

def set_flag(P, vz, soff):
    P(f'v_mov_b32 v{vz}, s{S_NONCE}'); P(f'v_mov_b32 v{vz+1}, 0')
    P('s_mov_b64 exec, 1')
    P(f'buffer_store_dword v{vz}, v{vz+1}, {rs(R_WS)}, s{soff} offen sc1', tag='flag')
    P('s_mov_b64 exec, -1')

def check(P, loads, regs):
    ok = P.label('ok'); rt = P.label('rt')
    def cmp():
        P(f'v_cmp_ne_u32 vcc, s{S_NONCE}, v{regs[0]}')
        for r in regs[1:]:
            P(f'v_cmp_ne_u32 s[{S_T0}:{S_T0+1}], s{S_NONCE}, v{r}'); P(f's_or_b64 vcc, vcc, s[{S_T0}:{S_T0+1}]')
    cmp(); P(f's_cbranch_vccz {ok}')
    vm, lg, hist = list(P.vm), list(P.lg), list(P.hist)
    P(f's_mov_b32 s{S_SPIN}, 0'); P(f'{rt}:')
    for l in loads: P(l)
    P.wait(vm=0); cmp(); P(f's_cbranch_vccz {ok}')
    P(f's_add_u32 s{S_SPIN}, s{S_SPIN}, 1'); P(f's_cmp_lt_u32 s{S_SPIN}, {SPIN_MAX}'); P(f's_cbranch_scc1 {rt}')
    P(f'{ok}:')
    P.vm, P.lg, P.hist = vm, lg, hist

class Stamper:
    def __init__(self, on, vreg): self.on = on; self.v = vreg; self.n = 0; self.names = []
    def __call__(self, P, name):
        if not self.on: return
        P.wait(lg=0)
        P(f's_memrealtime s[{S_STAMP}:{S_STAMP+1}]'); P(f's_memtime s[{S_STAMP-2}:{S_STAMP-1}]'); P.wait(lg=0)
        P(f'v_writelane_b32 v{self.v}, s{S_STAMP}, {self.n}')
        P(f'v_writelane_b32 v{self.v}, s{S_STAMP-2}, {self.n+32}')
        self.names.append(name); self.n += 1
    def flush(self, P, vtmp, base=0):
        if not self.on: return
        P(f's_lshl_b32 s{S_STAMP+2}, s2, 2'); P(f's_add_u32 s{S_STAMP+2}, s{S_STAMP+2}, s{S_WAVE}')
        P(f's_lshl_b32 s{S_STAMP+2}, s{S_STAMP+2}, 8'); P(f's_add_u32 s{S_STAMP+2}, s{S_STAMP+2}, {WS_STAMP+base}')
        P(f'v_lshlrev_b32 v{vtmp}, 2, v0')
        P(f'buffer_store_dword v{self.v}, v{vtmp}, s[{R_WS}:{R_WS+3}], s{S_STAMP+2} offen')
```

```python
from common import *
from g1 import silu_mul_ops, cost
from g2 import gen_m1
NX = 4; NW = 4
XRING = 0; WRING = 65536
HA = 160; HD = 24
def dslot(sl): return 65536 + 8192*sl if sl < 12 else 8192*(sl-12) if sl < 20 else 65536 + 8192*(sl-20)
XS = 65536 + 4*8192; VB = 65536 + 6*8192
M32 = 'v_mfma_f32_32x32x16_bf16'

def role_ffn(P, st, name):
    V = Alloc(1, 125); ACC = 128
    (sB, sJ, sA, sXo, sWo, sHo, sSt, sXl, sWl, sXoB, sFo,
     sRp, sC, sHb, sDo, sDl, sJ0, sVo, sXo2, sSg, sH2, sD2, sFh, sFv) = range(S_FREE, S_FREE+24)
    def emit(op):
        if callable(op): op()
        elif isinstance(op, tuple): P(op[0], tag=op[1])
        else: P(op)
    srd(P, R_A, P_WG, WGB); srd(P, R_B, P_WU, WGB, back=2048)
    P(f's_and_b32 s{S_T0}, s{S_XCD}, 1'); P(f's_lshl_b32 s{S_T0}, s{S_T0}, 2'); P(f's_and_b32 s{S_T1}, s{S_R}, 3'); P(f's_add_u32 s{sB}, s{S_T0}, s{S_T1}')
    P(f's_lshr_b32 s{S_T0}, s{S_XCD}, 1'); P(f's_and_b32 s{sA}, s{S_T0}, 1'); P(f's_mul_i32 s{S_T0}, s{S_T0}, 6'); P(f's_lshr_b32 s{S_T1}, s{S_R}, 2'); P(f's_add_u32 s{sJ}, s{S_T0}, s{S_T1}')
    P(f's_lshl_b32 s{S_T0}, s{sB}, 2'); P(f's_lshl_b32 s{S_T1}, s{sA}, 1'); P(f's_add_u32 s{S_T2}, s{S_T0}, s{S_T1}')
    P(f's_xor_b32 s{S_T3}, s{S_T2}, 2')
    P(f's_lshr_b32 s{S_T0}, s{S_WAVE}, 1'); P(f's_and_b32 s{S_T1}, s{S_WAVE}, 1'); P(f's_lshl_b32 s{S_T1}, s{S_T1}, 10'); P(f's_add_u32 s{S_T0}, s{S_T0}, s{S_T1}')
    P(f's_add_u32 s{sXo}, s{S_T0}, s{S_T2}'); P(f's_mul_i32 s{sXo}, s{sXo}, 1280')
    P(f's_add_u32 s{sXoB}, s{S_T0}, s{S_T3}'); P(f's_mul_i32 s{sXoB}, s{sXoB}, 1280')
    P(f's_lshl_b32 s{sXl}, s{S_WAVE}, 12'); P(f's_add_u32 s{sWl}, s{sXl}, {WRING}')
    P(f's_mul_i32 s{sWo}, s{S_WAVE}, {16*3072}'); P(f's_lshl_b32 s{S_T0}, s{sJ}, 7'); P(f's_add_u32 s{sWo}, s{sWo}, s{S_T0}')
    vxd = V(4); vwd = V(4); t0 = V(1, 2); t1 = V(); t2 = V()
    P(f'v_lshrrev_b32 v{t0}, 3, v0'); P(f'v_and_b32 v{t1}, 7, v0'); P(f'v_lshrrev_b32 v{t2}, 4, v0')
    P(f'v_xor_b32 v{t2}, v{t2}, v{t1}'); P(f'v_lshlrev_b32 v{t2}, 4, v{t2}')
    P(f'v_mul_u32_u24 v{vxd}, 40960, v{t0}'); P(f'v_add_u32 v{vxd}, v{vxd}, v{t2}')
    P(f'v_xor_b32 v{vxd+1}, 64, v{vxd}'); P(f'v_add_u32 v{vxd+1}, {8*40960-1024}, v{vxd+1}')
    P(f'v_add_u32 v{vxd+2}, {16*40960-2048}, v{vxd}'); P(f'v_add_u32 v{vxd+3}, {16*40960-2048}, v{vxd+1}')
    P(f'v_and_b32 v{t2}, 2, v{t0}'); P(f'v_xor_b32 v{t2}, v{t2}, v{t1}'); P(f'v_lshlrev_b32 v{t2}, 4, v{t2}')
    P(f'v_mul_u32_u24 v{vwd}, 3072, v{t0}'); P(f'v_add_u32 v{vwd}, v{vwd}, v{t2}')
    P(f'v_add_u32 v{vwd+1}, {8*3072-1024}, v{vwd}')
    P(f'v_xor_b32 v{vwd+2}, 64, v{vwd}'); P(f'v_xor_b32 v{vwd+3}, 64, v{vwd+1}')
    def dma_x(g):
        ops = [f's_add_u32 m0, s{sXl}, {XRING + (g % NX)*16384}']
        for i in range(4): ops.append((f'buffer_load_dwordx4 v{vxd+i}, {rs(R_X)}, s{sXo} offen offset:{1024*i} lds', f'x{g}'))
        ops.append(f's_mov_b32 s{sXo}, s{sXoB}' if g == 9 else f's_add_u32 s{sXo}, s{sXo}, 128')
        return ops
    def dma_w(g):
        ops = [f's_add_u32 m0, s{sWl}, {(g % NW)*16384}']
        for i in range(4):
            ops.append((f'buffer_load_dwordx4 v{vwd+i}, {rs(R_A if i < 2 else R_B)}, s{sWo} offen offset:{1024*i} lds', f'w{g}'))
        ops.append(f's_add_u32 s{sWo}, s{sWo}, {64*3072}')
        return ops
    PRE = opt('pre', 2)
    for op in dma_w(0) + dma_x(0): emit(op)
    P(f's_lshl_b32 s{S_T0}, s{sJ}, 2'); P(f's_add_u32 s{S_T0}, s{S_T0}, s{S_WAVE}')
    P(f's_mul_i32 s{sHo}, s{S_T2}, 192'); P(f's_add_u32 s{sHo}, s{sHo}, s{S_T0}'); P(f's_lshl_b32 s{sHo}, s{sHo}, 10'); P(f's_add_u32 s{sHo}, s{sHo}, {WS_H}')
    P(f's_mul_i32 s{sFo}, s{S_T2}, 48'); P(f's_add_u32 s{sFo}, s{sFo}, s{S_T0}'); P(f's_lshl_b32 s{sFo}, s{sFo}, 7'); P(f's_add_u32 s{sFo}, s{sFo}, {WS_FH}')
    P(f's_lshl_b32 s{sSt}, s{S_T2}, 10'); P(f's_add_u32 s{sSt}, s{sSt}, {WS_STAT}')
    srd(P, R_C, P_WD, WDB); srd(P, R_D, P_OUT, XB)
    P(f's_lshl_b32 s{S_T0}, s{S_XCD}, 1'); P(f's_and_b32 s{sJ0}, s{S_R}, 1'); P(f's_add_u32 s{sRp}, s{S_T0}, s{sJ0}')
    P(f's_lshr_b32 s{sC}, s{S_R}, 1'); P(f's_sub_u32 s{S_T0}, s{sC}, 10'); P(f's_cmp_ge_u32 s{sC}, 10'); P(f's_cselect_b32 s{sC}, s{S_T0}, s{sC}')
    P(f's_sub_u32 s{S_T0}, s{sC}, 5'); P(f's_cmp_ge_u32 s{sC}, 5'); P(f's_cselect_b32 s{S_T1}, s{S_T0}, s{sC}'); P(f's_cselect_b32 s{sSg}, 0x80008000, 0')
    P(f's_lshl_b32 s{S_T3}, s{sRp}, 2'); P(f's_add_u32 s{S_T3}, s{S_T3}, s{S_WAVE}')
    P(f's_mul_i32 s{S_T0}, s{S_T3}, 40960'); P(f's_lshl_b32 s{S_T1}, s{S_T1}, 7'); P(f's_add_u32 s{S_T0}, s{S_T0}, s{S_T1}'); P(f's_add_u32 s{sVo}, s{S_T0}, {WS_V}')
    P(f's_mul_i32 s{S_T0}, s{S_T3}, {96*1024}'); P(f's_add_u32 s{S_T0}, s{S_T0}, {WS_H}')
    P(f's_mul_i32 s{S_T2}, s{sJ0}, {24*1024}'); P(f's_add_u32 s{sHb}, s{S_T0}, s{S_T2}')
    P(f's_sub_u32 s{sH2}, s{S_T0}, s{S_T2}'); P(f's_add_u32 s{sH2}, s{sH2}, {24*1024}')
    P(f's_mul_i32 s{S_T0}, s{S_WAVE}, {16*1280}'); P(f's_lshl_b32 s{S_T2}, s{sC}, 7'); P(f's_add_u32 s{S_T0}, s{S_T0}, s{S_T2}')
    P(f's_mul_i32 s{S_T2}, s{sJ0}, {384*1280}'); P(f's_add_u32 s{sDo}, s{S_T0}, s{S_T2}')
    P(f's_sub_u32 s{sD2}, s{S_T0}, s{S_T2}'); P(f's_add_u32 s{sD2}, s{sD2}, {384*1280}')
    P(f's_lshl_b32 s{sDl}, s{S_WAVE}, 11')
    P(f's_lshr_b32 s{S_T0}, s{S_WAVE}, 1'); P(f's_and_b32 s{S_T1}, s{S_WAVE}, 1'); P(f's_lshl_b32 s{S_T2}, s{S_T1}, 10'); P(f's_add_u32 s{S_T0}, s{S_T0}, s{S_T2}')
    P(f's_lshl_b32 s{S_T2}, s{sRp}, 1'); P(f's_add_u32 s{S_T0}, s{S_T0}, s{S_T2}'); P(f's_mul_i32 s{S_T0}, s{S_T0}, 1280')
    P(f's_lshl_b32 s{S_T2}, s{sC}, 7'); P(f's_add_u32 s{sXo2}, s{S_T0}, s{S_T2}')
    P(f's_mul_i32 s{S_T0}, s{sRp}, 96'); P(f's_mul_i32 s{S_T2}, s{sJ0}, 24'); P(f's_add_u32 s{S_T0}, s{S_T0}, s{S_T2}'); P(f's_lshl_b32 s{S_T0}, s{S_T0}, 7'); P(f's_add_u32 s{sFh}, s{S_T0}, {WS_FH}')
    P(f's_lshl_b32 s{S_T1}, s{S_T1}, 2'); P(f's_lshr_b32 s{S_T0}, s{sRp}, 3'); P(f's_add_u32 s{S_T0}, s{S_T0}, s{S_T1}'); P(f's_lshl_b32 s{S_T0}, s{S_T0}, 7'); P(f's_add_u32 s{sFv}, s{S_T0}, {WS_FV}')
    vdd = V(2); vvd = V(4); vfh = V(); vfv = V(); vfl = V()
    P(f'v_and_b32 v{t2}, 2, v{t0}'); P(f'v_lshlrev_b32 v{t2}, 1, v{t2}'); P(f'v_xor_b32 v{t2}, v{t2}, v{t1}'); P(f'v_lshlrev_b32 v{t2}, 4, v{t2}')
    P(f'v_mul_u32_u24 v{vdd}, 1280, v{t0}'); P(f'v_add_u32 v{vdd}, v{vdd}, v{t2}'); P(f'v_add_u32 v{vdd+1}, {8*1280-1024}, v{vdd}')
    P(f'v_mul_u32_u24 v{vvd}, 640, v{t0}'); P(f'v_add_u32 v{vvd}, v{vvd}, v{t2}')
    for i in range(1, 4): P(f'v_add_u32 v{vvd+i}, {i*(8*640-1024)}, v{vvd}')
    P(f'v_min_u32 v{t2}, 47, v0'); P(f'v_add_u32 v{vfh}, 24, v{t2}'); P(f'v_cmp_gt_u32 vcc, 24, v{t2}'); P(f'v_cndmask_b32 v{vfh}, v{vfh}, v{t2}, vcc'); P(f'v_lshlrev_b32 v{vfh}, 7, v{vfh}')
    P(f'v_lshrrev_b32 v{vfv}, 1, v0'); P(f'v_lshlrev_b32 v{vfv}, 10, v{vfv}'); P(f'v_and_b32 v{t2}, 1, v0'); P(f'v_lshl_add_u32 v{vfv}, v{t2}, 8, v{vfv}')
    for g in range(1, PRE):
        for op in dma_w(g) + dma_x(g): emit(op)
    st(P, 'issued')
    vxr = V(4); vwr = V(); vlin = V(); vst = V()
    P(f'v_and_b32 v{t0}, 31, v0'); P(f'v_lshrrev_b32 v{t1}, 5, v0'); P(f'v_bfe_u32 v{t2}, v0, 1, 3')
    P(f'v_xor_b32 v{t1}, v{t1}, v{t2}'); P(f'v_lshlrev_b32 v{t1}, 4, v{t1}'); P(f'v_lshl_add_u32 v{vxr}, v{t0}, 7, v{t1}')
    for ks in range(1, 4): P(f'v_xor_b32 v{vxr+ks}, {32*ks}, v{vxr}')
    P(f'v_lshlrev_b32 v{vst}, 4, v{t0}'); P(f'v_lshlrev_b32 v{vlin}, 4, v0')
    P(f'v_bfe_u32 v{t0}, v0, 3, 2'); P(f'v_xor_b32 v{t0}, s{S_WAVE}, v{t0}'); P(f'v_lshlrev_b32 v{vwr}, 5, v{t0}')
    P(f'v_and_b32 v{t0}, 3, v0'); P(f'v_lshl_add_u32 v{vwr}, v{t0}, 3, v{vwr}')
    P(f'v_bfe_u32 v{t0}, v0, 2, 2'); P(f'v_lshl_add_u32 v{vwr}, v{t0}, 7, v{vwr}')
    P(f'v_bfe_u32 v{t0}, v0, 4, 1'); P(f'v_lshl_add_u32 v{vwr}, v{t0}, 11, v{vwr}')
    P(f'v_lshrrev_b32 v{t0}, 5, v0'); P(f'v_lshl_add_u32 v{vwr}, v{t0}, 10, v{vwr}')
    P(f'v_add_u32 v{vwr}, {WRING}, v{vwr}')
    vtr = V(2); vx2 = V(); m1 = V(16)
    P(f'v_and_b32 v{t0}, 1, v0'); P(f'v_lshlrev_b32 v{vtr}, 5, v{t0}')
    P(f'v_bfe_u32 v{t0}, v0, 1, 1'); P(f'v_lshl_add_u32 v{vtr}, v{t0}, 3, v{vtr}')
    P(f'v_bfe_u32 v{t0}, v0, 4, 1'); P(f'v_lshl_add_u32 v{vtr}, v{t0}, 4, v{vtr}')
    P(f'v_bfe_u32 v{t0}, v0, 3, 1'); P(f'v_lshl_add_u32 v{vtr}, v{t0}, 6, v{vtr}')
    P(f'v_bfe_u32 v{t0}, v0, 2, 2'); P(f'v_lshl_add_u32 v{vtr}, v{t0}, 7, v{vtr}')
    P(f'v_lshrrev_b32 v{t0}, 5, v0'); P(f'v_lshl_add_u32 v{vtr}, v{t0}, 9, v{vtr}'); P(f'v_xor_b32 v{vtr+1}, 64, v{vtr}')
    P(f'v_and_b32 v{t0}, 31, v0'); P(f'v_lshrrev_b32 v{t1}, 5, v0'); P(f'v_lshlrev_b32 v{t1}, 1, v{t1}'); P(f'v_bfe_u32 v{t2}, v0, 1, 3')
    P(f'v_xor_b32 v{t2}, v{t1}, v{t2}'); P(f'v_lshlrev_b32 v{t2}, 4, v{t2}'); P(f'v_lshl_add_u32 v{vx2}, v{t0}, 7, v{t2}')
    P(f's_add_u32 s{S_T0}, s{sXl}, {XS}'); P(f'v_add_u32 v{vx2}, s{S_T0}, v{vx2}')
    mk = V.mark()
    sel = V(4); cs = V(4); ka = V(4); kb = V(4); xf = V(16); stat = V(16); tmp = V(8); hp = V(8)
    vs1, vh = hp, hp+1
    P(f's_and_b32 s{S_T1}, s{S_WAVE}, 1'); P(f's_lshl_b32 s{S_T1}, s{S_T1}, 5')
    P(f'v_add_u32 v{t0}, s{S_T1}, v{t0}'); P(f'v_cvt_f32_u32 v{vs1}, v{t0}'); P(f'v_mul_f32 v{vs1}, {fl(1/64)}, v{vs1}'); P(f'v_cvt_f32_u32 v{vh}, v{t1}')
    P(f'v_mov_b32 v{tmp+5}, {fl(32.0)}'); P('v_cmp_gt_u32 vcc, 32, v0')
    for op in gen_m1(P, m1, vs1, tmp, None, vh): P(op)
    P(f'v_lshrrev_b32 v{t0}, 2, v0'); P(f'v_lshrrev_b32 v{t1}, 4, v0'); P(f'v_xor_b32 v{t0}, v{t0}, v{t1}'); P(f'v_and_b32 v{t0}, 1, v{t0}')
    P(f'v_add_u32 v{t0}, -1, v{t0}'); P(f'v_and_b32 v{sel}, 0x3f803f80, v{t0}')
    for i in range(1, 4): P(f'v_mov_b32 v{sel+i}, v{sel}'); P(f'v_mov_b32 v{ka+i}, 0'); P(f'v_mov_b32 v{kb+i}, 0')
    nonce(P)
    def rd_x(n, t):
        g, ks = divmod(n, 4)
        return (f'ds_read_b128 {q4(xf+4*t)}, v{vxr+ks} offset:{XRING + (g % NX)*16384 + t*4096}', f'rx{t}')
    def rd_w(n, q):
        g, ks = divmod(n, 4)
        return (f'ds_read_b64_tr_b16 {q2(4*n+2*q, "a")}, v{vwr} offset:{(g % NW)*16384 + ks*4096 + q*512}', 'rw')
    ld_stat = [f'buffer_load_dwordx4 {q4(stat+4*t)}, v{vst}, {rs(R_WS)}, s{sSt} offen offset:{512*t} sc1' for t in range(4)]
    def chk_stat():
        check(P, ld_stat, [stat+4*t+3 for t in range(4)]); P(f's_xor_b32 s{sSt}, s{sSt}, 2048')
    def epi_all(ph):
        def pre(t):
            acc = ACC + 64*ph + 16*t
            return [f'v_mov_b32 v{kb}, v{stat+4*t}', f'{M32} v[{acc}:{acc+15}], {q4(ka)}, {q4(kb)}, v[{acc}:{acc+15}]']
        seq = pre(0) + pre(1)
        for t in range(4):
            acc = ACC + 64*ph + 16*t; o = hp + 4*(t & 1)
            b = silu_mul_ops(acc, stat+4*t+1, stat+4*t+2, tmp, o)
            b.append((f'buffer_store_dwordx4 {q4(o)}, v{vlin}, {rs(R_WS)}, s{sHo} offen sc1', f'h{ph}'))
            b.append(f's_add_u32 s{sHo}, s{sHo}, {96*1024}')
            if t + 2 < 4: b.insert(8, pre(t+2)[0]); b.insert(12, pre(t+2)[1])
            seq += b
        return seq
    caug = [f'v_cvt_pk_bf16_f32 v{ka}, v{cs}, v{cs}', f'v_and_b32 v{t0}, 0xffff0000, v{ka}', f'v_sub_f32 v{t0}, v{cs}, v{t0}',
            f'v_cvt_pk_bf16_f32 v{ka}, v{cs}, v{t0}', f'v_cmp_gt_u32 vcc, 32, v0', f'v_mov_b32 v{t1}, 0', f'v_mov_b32 v{t2}, 0', f'v_cndmask_b32 v{ka}, 0, v{ka}, vcc']
    def flag_h(ph):
        P.wait_tag(f'h{ph}'); set_flag(P, t0, sFo)
        if ph == 0:
            P(f's_mul_i32 s{S_T0}, s{sA}, {2*96*128}'); P(f's_add_u32 s{sFo}, s{sFo}, {96*128}'); P(f's_sub_u32 s{sFo}, s{sFo}, s{S_T0}')
    def dma_d(sl):
        ops = [f's_add_u32 m0, s{sDl}, {dslot(sl)}']
        for i in range(2): ops.append((f'buffer_load_dwordx4 v{vdd+i}, {rs(R_C)}, s{sDo} offen offset:{1024*i} lds', f'd{sl}'))
        if sl == 11: ops.append(f's_mov_b32 s{sDo}, s{sD2}')
        else: ops.append(f's_add_u32 s{sDo}, s{sDo}, {64*1280*(7 if sl % 6 == 5 else 1)}')
        return ops
    def ld_h(n):
        r = HA + 4*(n % HD); sl, ks = divmod(n, 4)
        ops = [(f'buffer_load_dwordx4 {q4(r, "a")}, v{vlin}, {rs(R_WS)}, s{sHb} offen offset:{1024*ks} sc1', 'h')]
        if ks == 3:
            if sl == 11: ops.append(f's_mov_b32 s{sHb}, s{sH2}')
            else: ops.append(f's_add_u32 s{sHb}, s{sHb}, {4096*(7 if sl % 6 == 5 else 1)}')
        return ops
    ld_fh = f'buffer_load_dword v{vfl}, v{vfh}, {rs(R_WS)}, s{sFh} offen sc1'
    ld_fv = f'buffer_load_dword v{vfl}, v{vfv}, {rs(R_WS)}, s{sFv} offen sc1'
    def next_fh():
        P(f's_mul_i32 s{S_T0}, s{sJ0}, {48*128}'); P(f's_add_u32 s{sFh}, s{sFh}, {24*128}'); P(f's_sub_u32 s{sFh}, s{sFh}, s{S_T0}')
    P.wait_tag('x0', 'w0'); P('s_barrier')
    st(P, 'first')
    for op in [rd_w(0, 0), rd_w(0, 1)] + [rd_x(0, t) for t in range(4)]: emit(op)
    dmaq = []; fillq = []; credit = 0.0
    for g in range(PRE, 4): dmaq += dma_w(g) + dma_x(g)
    def isvm(op): return isinstance(op, tuple) or (isinstance(op, str) and op.startswith('buffer'))
    def pop_dma(nd):
        k = 0
        while dmaq and k < nd:
            op = dmaq.pop(0); emit(op)
            if isvm(op): k += 1
        while dmaq and not isvm(dmaq[0]): emit(dmaq.pop(0))
    def gap(nd, nf):
        nonlocal credit
        pop_dma(nd)
        credit += nf
        while fillq and credit > 0:
            op = fillq.pop(0); emit(op); credit -= 1 if callable(op) else cost(op[0] if isinstance(op, tuple) else op)
        if not fillq: credit = 0.0
    def queued(tag): return any(isinstance(o, tuple) and o[1] == tag for o in dmaq)
    fill_rate = opt('fr', 3.0); nd = 0; flagged = False; epi_done = None
    for n in range(80):
        ph, nn = divmod(n, 40); g, ks = divmod(n, 4); last = (n == 79)
        def mf(t):
            acc = ACC + 64*ph + 16*t
            P(f'{M32} v[{acc}:{acc+15}], {q4(4*nn, "a")}, {q4(xf+4*t)}, {"0" if nn == 0 else f"v[{acc}:{acc+15}]"}')
        wnext = [rd_w(n+1, 0), rd_w(n+1, 1)] if n + 1 < 40 else []
        fr = fill_rate if ph else 0
        if n == opt('nstat', 32): dmaq += ld_stat
        if n == 41: fillq += caug + [chk_stat] + epi_all(0)
        if n > 41 and not fillq and epi_done is None: epi_done = n
        if n == 72:
            assert not fillq, len(fillq)
            dmaq += ld_stat
        if n == 76: dmaq.append(ld_fh)
        big = len([o for o in dmaq if isvm(o)]) > 8
        P.wait_tag('rx1', 'rw')
        if ks < 3:
            mf(0)
            for op in wnext[:1] + [rd_x(n+1, 0)]: emit(op)
            gap(1 if big else 0, fr)
            mf(1)
            for op in wnext[1:] + [rd_x(n+1, 1)]: emit(op)
            gap(0 if wnext else 1, fr)
            P.wait_tag('rx3')
            mf(2); emit(rd_x(n+1, 2)); gap(1 if wnext else 0, fr)
            mf(3); emit(rd_x(n+1, 3)); gap(1, fr)
        else:
            mf(0); gap(1, fr+1)
            mf(1)
            assert not queued(f'x{g+1}') and not queued(f'w{g+1}')
            P.wait(lg=0); P.wait_tag(f'x{g+1}', f'w{g+1}'); P('s_barrier')
            if g + NW < 10: dmaq += dma_w(g+NW)
            if g + NX < 20: dmaq += dma_x(g+NX)
            if g >= 9:
                for _ in range(2):
                    if nd < 12 or nd < 12 + 2*(g - 15): dmaq += dma_d(nd); nd += 1
            if not last:
                for op in wnext + [rd_x(n+1, 0)]: emit(op)
            mf(2)
            if not last: emit(rd_x(n+1, 1)); emit(rd_x(n+1, 2))
            mf(3)
            if not last: emit(rd_x(n+1, 3))
            gap(1, fr)
            if epi_done is not None and not flagged and n >= epi_done + opt('fdel', 5):
                flag_h(0); flagged = True
        if ph == 0:
            P(f'v_mfma_f32_16x16x32_bf16 {q4(cs)}, {q4(sel)}, {q4(4*nn, "a")}, {"0" if n == 0 else q4(cs)}')
        if n == 39: st(P, 'phA')
    assert flagged and nd == 20, (flagged, nd)
    print('epilogue A done at', epi_done, 'dmaq left', len(dmaq))
    st(P, 'phB')
    P(f's_mul_i32 s{S_T0}, s{sA}, {8*96*1024}'); P(f's_sub_u32 s{sHo}, s{sHo}, s{S_T0}')
    chk_stat()
    LEAD = opt('lead', 20)
    seq = epi_all(1); nh = 0; c = 0; checked = False
    for i, op in enumerate(seq):
        emit(op); c += cost(op[0] if isinstance(op, tuple) else op)
        if c >= opt('esp', 14):
            c = 0
            if dmaq: pop_dma(1)
            elif not checked: check(P, [ld_fh], [vfl]); next_fh(); checked = True; st(P, 'hA')
            elif nh < LEAD:
                for o in ld_h(nh): emit(o)
                nh += 1
    assert checked and not dmaq
    st(P, 'epiB')
    P(f's_cmp_ge_u32 s{S_R}, 20'); P(f's_cbranch_scc1 {name}_help')
    vm, lg, hist = list(P.vm), list(P.lg), list(P.hist)
    V.release(mk)
    wf = V(16); m1n = V(16); tmp2 = V(16); vtm = V(2); vth = V(2); vtv = V(2); vxs = V(4); vor = V()
    SAC = 160; XF = 192; XP = 224; TQ = 224
    while nh < LEAD:
        for o in ld_h(nh): emit(o)
        nh += 1
    for i in range(2): P(f'v_add_u32 v{vtm+i}, 65536, v{vtr+i}'); P(f'v_add_u32 v{vth+i}, 131072, v{vtr+i}')
    def rd_d(n, dt, q):
        sl, ks = divmod(n, 4); ad = dslot(sl) + ks*2048 + q*1024
        r = wf + 8*(n & 1) + 4*dt + 2*q
        return (f'ds_read_b64_tr_b16 {q2(r)}, v{(vtr, vtm, vth)[ad >> 16]+dt} offset:{ad & 65535}', f'rd{n&1}')
    P.wait_tag(*[f'd{i}' for i in range(20)]); P('s_barrier')
    for dt in range(2):
        for q in range(2): emit(rd_d(0, dt, q))
    fillq = [f's_lshr_b32 s{S_T0}, s{S_WAVE}, 1', f's_lshl_b32 s{S_T0}, s{S_T0}, 14', f's_add_u32 s{S_T0}, s{S_T0}, {VB}',
             f'v_add_u32 v{vtv}, s{S_T0}, v{vtr}', f'v_add_u32 v{vtv+1}, s{S_T0}, v{vtr+1}',
             f's_add_u32 s{S_T0}, s{sXl}, {XS}', f'v_add_u32 v{vor}, s{S_T0}, v{vlin}', f'v_mov_b32 v{vxs}, v{vx2}',
             f'v_xor_b32 v{vxs+1}, 16, v{vx2}', f'v_xor_b32 v{vxs+2}, 64, v{vx2}', f'v_xor_b32 v{vxs+3}, 80, v{vx2}']
    for op in fillq: P(op)
    fillq = [f'v_xor_b32 v{m1n+i}, s{sSg}, v{m1+i}' for i in range(16)]
    vdma = []
    for hf in range(2):
        vdma.append(f's_lshl_b32 s{S_T2}, s{S_WAVE}, 13'); vdma.append(f's_add_u32 m0, s{S_T2}, {VB + 4096*hf}')
        for i in range(4): vdma.append((f'buffer_load_dwordx4 v{vvd+i}, {rs(R_WS)}, s{sVo} offen offset:{1024*i} sc1 lds', 'v'))
        vdma.append(f's_add_u32 s{sVo}, s{sVo}, {32*640}')
    xdma = [f's_add_u32 m0, s{sXl}, {XS}'] + [(f'buffer_load_dwordx4 v{vxd+i}, {rs(R_X)}, s{sXo2} offen offset:{1024*i} lds', 'x') for i in range(4)]
    xrd = [f'ds_read_b128 {q4(XP+4*i)}, v{vxs+i}' for i in range(4)]
    xun = []
    for i in range(16):
        xun.append(f'v_lshlrev_b32 v{XF+2*i}, 16, v{XP+i}'); xun.append(f'v_and_b32 v{XF+2*i+1}, 0xffff0000, v{XP+i}')
    def pop_fill(c):
        while fillq and c > 0:
            op = fillq.pop(0); emit(op); c -= cost(op)
    NFB = opt('nfb', 6); NV = opt('nv', 78)
    for n in range(96):
        hr = HA + 4*(n % HD)
        def mf(dt):
            acc = ACC + 16*dt; r = wf + 8*(n & 1) + 4*dt
            P(f'{M32} v[{acc}:{acc+15}], {q4(r)}, {q4(hr, "a")}, {"0" if n == 0 else f"v[{acc}:{acc+15}]"}')
        if n == NFB: flag_h(1); st(P, 'flagB')
        if n + LEAD == 48 - opt('pollb', 6): P(ld_fh)
        if n + LEAD == 48: check(P, [ld_fh], [vfl]); st(P, 'hB')
        if n == NV - 6: P(ld_fv)
        if n == NV: check(P, [ld_fv], [vfl]); dmaq += vdma; st(P, 'V')
        if n == 60: P.wait_tag('x'); fillq += xrd + xun
        P.wait_tag(f'rd{n&1}')
        if n == 23: P('s_barrier'); dmaq += dma_d(20) + dma_d(21) + dma_d(22) + dma_d(23) + xdma
        if n == 59: assert not dmaq; P.wait_tag('d20', 'd21', 'd22', 'd23'); P('s_barrier')
        mf(0)
        if n < 95: emit(rd_d(n+1, 0, 0)); emit(rd_d(n+1, 0, 1))
        if n + LEAD < 96:
            for op in ld_h(n + LEAD): emit(op)
        mf(1)
        if n < 95: emit(rd_d(n+1, 1, 0)); emit(rd_d(n+1, 1, 1))
        pop_dma(1); pop_fill(2)
    assert not dmaq and not fillq
    st(P, 'g2loop')
    P.wait_tag('v'); P('s_barrier')
    seq = [(p, ks) for p in range(2) for ks in range(4)]
    def rd_v(i, dt, q):
        p, ks = seq[i]; r = wf + 8*(i & 1) + 4*dt + 2*q
        return f'ds_read_b64_tr_b16 {q2(r)}, v{vtv+dt} offset:{p*8192 + ks*2048 + q*1024}'
    for i in range(0, 32, 4):
        for j in range(4): fillq.append(f'v_mul_f32 v{TQ+i+j}, {fl(-LOG2E)}, v{ACC+i+j}')
        for j in range(4): fillq.append(f'v_exp_f32 v{TQ+i+j}, v{TQ+i+j}')
        for j in range(4): fillq.append(f'v_fmaak_f32 v{TQ+i+j}, v{t2}, v{TQ+i+j}, {fl(2048.0)}')
        for j in range(4): fillq.append(f'v_rcp_f32 v{TQ+i+j}, v{TQ+i+j}')
        for j in range(4): fillq.append(f'v_mul_f32 v{TQ+i+j}, v{TQ+i+j}, v{ACC+i+j}')
    P(f'v_mov_b32 v{t2}, {fl(2048.0)}')
    for dt in range(2):
        for q in range(2): P(rd_v(0, dt, q))
    for i in range(8):
        p, ks = seq[i]; mm = (m1n if p else m1) + 4*ks
        for dt in range(2):
            acc = SAC + 16*dt; r = wf + 8*(i & 1) + 4*dt
            P(f'{M32} v[{acc}:{acc+15}], {q4(r)}, {q4(mm)}, {"0" if i == 0 else f"v[{acc}:{acc+15}]"}')
            if i < 7: P(rd_v(i+1, dt, 0)); P(rd_v(i+1, dt, 1))
            pop_fill(10)
    pop_fill(10000)
    for c4 in range(4):
        for i in range(8*c4, 8*c4+8, 2):
            P(f'v_pk_fma_f32 {q2(XF+i)}, {q2(TQ+i)}, {q2(SAC+i)}, {q2(XF+i)}')
        for i in range(4): P(f'v_cvt_pk_bf16_f32 v{wf+4*c4+i}, v{XF+8*c4+2*i}, v{XF+8*c4+2*i+1}')
        P(f'ds_write_b128 v{vxs+c4}, {q4(wf+4*c4)}')
    P.wait(lg=0)
    for i in range(4): P(f'ds_read_b128 {q4(tmp2+4*i)}, v{vor} offset:{1024*i}')
    for i in range(4): P(f'buffer_store_dwordx4 {q4(tmp2+4*i)}, v{vxd+i}, {rs(R_D)}, s{sXo2} offen offset:{1024*i}')
    st(P, 'stored')
    if st.on: P.wait_all(); st(P, 'end'); st.flush(P, 1)
    P('s_endpgm')
    P(f'{name}_help:'); P.vm, P.lg, P.hist = vm, lg, hist
    flag_h(1)
    P(f'v_lshlrev_b32 v{t2}, 7, v0')
    if opt('hpf', 1):
        P(f's_lshl_b32 s{S_T3}, s{sRp}, 2'); P(f's_add_u32 s{S_T3}, s{S_T3}, s{S_WAVE}'); P(f's_mul_i32 s{S_T3}, s{S_T3}, {96*1024}'); P(f's_add_u32 s{S_T3}, s{S_T3}, {WS_H}')
        P(f's_mul_i32 s{S_T2}, s{sJ0}, {24*1024}'); P(f's_add_u32 s{S_T2}, s{S_T2}, s{S_T3}'); P(f's_lshl_b32 s{S_T1}, s{sC}, 13'); P(f's_add_u32 s{sHb}, s{S_T2}, s{S_T1}')
        P(f's_add_u32 s{sHb}, s{sHb}, {48*1024}')
        P(f'buffer_load_dword v{tmp}, v{t2}, {rs(R_WS)}, s{sHb} offen sc1')
        P(f's_add_u32 s{sHb}, s{S_T2}, {64*1024}')
        P(f'buffer_load_dword v{tmp+1}, v{t2}, {rs(R_WS)}, s{sHb} offen sc1')
        P(ld_fh); check(P, [ld_fh], [vfl])
        P(f's_lshl_b32 s{S_T1}, s{sC}, 13'); P(f's_add_u32 s{sHb}, s{sH2}, s{S_T1}')
        P(f'buffer_load_dword v{tmp+2}, v{t2}, {rs(R_WS)}, s{sHb} offen sc1')
        P(f's_mul_i32 s{S_T0}, s{sC}, {32*1024}'); P(f's_add_u32 s{sHb}, s{sH2}, s{S_T0}'); P(f's_add_u32 s{sHb}, s{sHb}, {16*1024}')
        P(f'buffer_load_dword v{tmp+3}, v{t2}, {rs(R_WS)}, s{sHb} offen sc1')
        P(f's_add_u32 s{sHb}, s{sH2}, s{S_T1}'); P(f's_add_u32 s{sHb}, s{sHb}, {56*1024}')
        P(f'buffer_load_dword v{tmp+4}, v{t2}, {rs(R_WS)}, s{sHb} offen sc1')
    P(f's_lshl_b32 s{S_T0}, s2, 2'); P(f's_add_u32 s{S_T0}, s{S_T0}, s{S_WAVE}'); P(f's_cmp_eq_u32 s{S_T0}, 640'); P(f's_cbranch_scc1 {name}_bump'); P('s_endpgm')
    P(f'{name}_bump:')
    P(f'v_lshrrev_b32 v{t0}, 3, v0'); P(f'v_mul_u32_u24 v{t0}, {192*128}, v{t0}'); P(f'v_and_b32 v{t1}, 7, v0'); P(f'v_lshl_add_u32 v{t0}, v{t1}, 9, v{t0}')
    P(f'v_lshlrev_b32 v{t1}, 9, v0')
    for i in range(3): P(f's_mov_b32 s{sB+i}, {WS_FH + 4096*i}')
    P(f's_mov_b32 s{sXo}, {WS_FV}')
    lds_ = [f'buffer_load_dword v{xf+i}, v{t0}, {rs(R_WS)}, s{sB+i} offen sc1' for i in range(3)] + [f'buffer_load_dword v{xf+3}, v{t1}, {rs(R_WS)}, s{sXo} offen sc1']
    for l in lds_: P(l)
    check(P, lds_, [xf+i for i in range(4)])
    P(f's_mov_b32 s{sXo}, {WS_GEN}'); set_flag(P, t0, sXo)
    P('s_endpgm')
```

```python
from common import *
from g1 import cost
XT = 0
ZB = 40960
STG = 81920
SST = 123904
A2B = 124928
ROWP = 656
sG, sP, sSig, sTb, sO1, sO2, sK0, sFs = range(S_FREE, S_FREE+8)
sW = S_FREE + 8
sMask, sG0 = S_FREE+16, S_FREE+18
MF = 'v_mfma_f32_16x16x32_bf16'

class Ctx: pass

def spec_setup(P):
    C = Ctx(); V = C.V = Alloc(1, 125); C.bg = []; C.cnt = 0
    P(f's_sub_u32 s{S_T0}, s{S_R}, 24'); P(f's_and_b32 s{sP}, s{S_T0}, 1'); P(f's_lshr_b32 s{S_T0}, s{S_T0}, 1')
    P(f's_lshl_b32 s{sG}, s{S_XCD}, 2'); P(f's_add_u32 s{sG}, s{sG}, s{S_T0}')
    P(f's_mul_i32 s{sSig}, s{sP}, 0x80008000')
    P(f's_mul_i32 s{sTb}, s{S_WAVE}, 5'); P(f's_lshr_b32 s{sTb}, s{sTb}, 1')
    P(f's_sub_u32 s{sK0}, 2, s{sP}')
    C.t0, C.t1, C.t2, C.t3 = V(1, 2), V(), V(), V()
    C.g = V(); C.n = V(); C.lin = V(); C.g4f = V(); C.stw = V(); C.strd = V()
    P(f'v_lshrrev_b32 v{C.g}, 4, v0'); P(f'v_and_b32 v{C.n}, 15, v0'); P(f'v_lshlrev_b32 v{C.lin}, 4, v0')
    P(f'v_cvt_f32_u32 v{C.g4f}, v{C.g}'); P(f'v_mul_f32 v{C.g4f}, 4.0, v{C.g4f}')
    P(f'v_lshrrev_b32 v{C.t0}, 3, v0'); P(f'v_and_b32 v{C.t1}, 7, v0'); P(f'v_mul_u32_u24 v{C.strd}, {ROWP}, v{C.t0}'); P(f'v_lshl_add_u32 v{C.strd}, v{C.t1}, 4, v{C.strd}')
    P(f's_mul_i32 s{S_T0}, s{S_WAVE}, {16*ROWP}'); P(f's_add_u32 s{S_T0}, s{S_T0}, {STG}'); P(f'v_add_u32 v{C.strd}, s{S_T0}, v{C.strd}')
    return C

def bg(P, C, n=1):
    for _ in range(n):
        if C.bg: P(C.bg.pop(0))

def stage_out(P, C, voff, soff, step8, tmp, tag):
    for hf in range(2):
        for c in range(5): P(f'ds_read_b128 {q4(tmp+4*(5*hf+c))}, v{C.strd} offset:{hf*8*ROWP + c*128}')
    for hf in range(2):
        for c in range(5): P(f'buffer_store_dwordx4 {q4(tmp+4*(5*hf+c))}, v{voff}, s[{R_WS}:{R_WS+3}], s{soff} offen offset:{c*128} sc1', tag=tag)
        if hf == 0: P(f's_add_u32 s{soff}, s{soff}, {step8}')

def s1_issue(P, C):
    V = C.V; t0, t1, t2 = C.t0, C.t1, C.t2
    vx = V()
    P(f'v_lshrrev_b32 v{t0}, 3, v0'); P(f'v_and_b32 v{t1}, 7, v0'); P(f'v_and_b32 v{t2}, 6, v{t0}'); P(f'v_xor_b32 v{t2}, v{t2}, v{t1}')
    P(f'v_mul_u32_u24 v{vx}, 40960, v{t0}'); P(f'v_lshl_add_u32 v{vx}, v{t2}, 4, v{vx}')
    P(f's_lshl_b32 s{S_T0}, s{S_WAVE}, 9'); P(f's_add_u32 s{S_T0}, s{S_T0}, s{sG}'); P(f's_mul_i32 s{sO1}, s{S_T0}, 1280')
    P(f's_mul_i32 s{S_T1}, s{S_WAVE}, 20480')
    for hf in range(2):
        for cb in range(10):
            P(f's_add_u32 m0, s{S_T1}, {XT + (hf*10+cb)*1024 - cb*128}')
            P(f'buffer_load_dwordx4 v{vx}, s[{R_X}:{R_X+3}], s{sO1} offen offset:{cb*128} lds', tag=f'x{hf}_{cb}')
        if hf == 0: P(f's_add_u32 s{sO1}, s{sO1}, {8*40960}')

def s1_genm(P, C, M):
    t0, t1, t2, t3 = C.t0, C.t1, C.t2, C.t3
    P(f'v_lshrrev_b32 v{t0}, 1, v{C.g}'); P(f'v_and_b32 v{t1}, 1, v{C.g}'); P(f'v_lshlrev_b32 v{t0}, 2, v{t0}'); P(f'v_add_lshl_u32 v{t0}, v{t0}, v{t1}, 2')
    P(f'v_cvt_f32_u32 v{t3}, v{t0}')
    P(f's_and_b32 s{S_T0}, s{S_WAVE}, 1'); P(f's_lshl_b32 s{S_T0}, s{S_T0}, 5')
    for nt in range(2):
        P(f'v_add_u32 v{t0}, s{S_T0}, v{C.n}')
        if nt: P(f'v_add_u32 v{t0}, 16, v{t0}')
        else:
            P(f'v_cmp_eq_u32 vcc, 1, v{t0}'); P(f'v_cndmask_b32 v{t0}, v{t0}, 64, vcc')
        P(f'v_and_b32 v{t1}, 1, v{t0}'); P(f'v_lshrrev_b32 v{t0}, 1, v{t0}')
        P(f'v_cvt_f32_u32 v{t1}, v{t1}'); P(f'v_cvt_f32_u32 v{t0}, v{t0}')
        P(f'v_mul_f32 v{t0}, {fl(1/64)}, v{t0}'); P(f'v_mul_f32 v{t1}, {fl(-0.25)}, v{t1}')
        P(f'v_fmac_f32 v{t1}, v{t0}, v{t3}')
        for ks in range(2):
            for j in range(8): P(f'v_fmamk_f32 v{M+16*nt+8*ks+j}, v{t0}, {fl(float(32*ks + 8*(j>>2) + (j&3)))}, v{t1}')
        for i in range(16): P(f'v_cos_f32 v{M+16*nt+i}, v{M+16*nt+i}')

def s1_main(P, C, st, M, B):
    V = C.V; t0, t1, t2, t3 = C.t0, C.t1, C.t2, C.t3
    mk = V.mark()
    va = V(10); vrd = V(); ones = V(); sacc = V(4); rec = V(4)
    P(f'v_bfe_u32 v{t0}, v0, 2, 3'); P(f'v_lshlrev_b32 v{t0}, 7, v{t0}'); P(f'v_lshrrev_b32 v{t1}, 5, v0'); P(f'v_mul_u32_u24 v{t1}, 20480, v{t1}'); P(f'v_add_u32 v{t0}, v{t0}, v{t1}')
    P(f'v_and_b32 v{t1}, 3, v0'); P(f'v_lshl_add_u32 v{t0}, v{t1}, 3, v{t0}'); P(f'v_bfe_u32 v{t1}, v0, 3, 2'); P(f'v_lshl_add_u32 v{t0}, v{t1}, 5, v{t0}')
    P(f's_lshr_b32 s{S_T0}, s{S_WAVE}, 1'); P(f's_mul_i32 s{S_T0}, s{S_T0}, 5')
    for tt in range(5):
        for mir in range(2):
            if mir: P(f's_sub_u32 s{S_T1}, {19-tt}, s{S_T0}')
            else: P(f's_add_u32 s{S_T1}, s{S_T0}, {tt}')
            P(f's_and_b32 s{S_T2}, s{S_T1}, 3'); P(f's_lshl_b32 s{S_T2}, s{S_T2}, 5')
            if mir: P(f's_or_b32 s{S_T2}, s{S_T2}, 24')
            P(f's_lshr_b32 s{S_T1}, s{S_T1}, 2'); P(f's_lshl_b32 s{S_T1}, s{S_T1}, 10')
            P(f'v_xor_b32 v{va+2*tt+mir}, s{S_T2}, v{t0}'); P(f'v_add_u32 v{va+2*tt+mir}, s{S_T1}, v{va+2*tt+mir}')
    P(f's_and_b32 s{S_T1}, s{S_WAVE}, 1'); P(f's_mul_i32 s{S_T1}, s{S_T1}, {32*ROWP}'); P(f's_add_u32 s{S_T1}, s{S_T1}, {STG}')
    P(f'v_mul_u32_u24 v{C.stw}, {ROWP}, v{C.n}'); P(f'v_lshl_add_u32 v{C.stw}, v{C.g}, 4, v{C.stw}'); P(f'v_add_u32 v{C.stw}, s{S_T1}, v{C.stw}')
    stw2 = V()
    P(f's_lshr_b32 s{S_T0}, s{S_WAVE}, 1'); P(f's_mul_i32 s{S_T1}, s{S_T0}, {192-8}'); P(f's_add_u32 s{S_T1}, s{S_T1}, 8'); P(f's_mul_i32 s{S_T0}, s{S_T0}, {128+8}')
    P(f'v_add_u32 v{stw2}, s{S_T1}, v{C.stw}'); P(f'v_add_u32 v{C.stw}, s{S_T0}, v{C.stw}')
    P(f's_mul_i32 s{S_T1}, s{S_WAVE}, 20480'); P(f'v_add_u32 v{vrd}, s{S_T1}, v{C.lin}')
    P(f'v_mov_b32 v{ones}, 0x3f803f80')
    for i in range(4): P(f'v_mov_b32 v{sacc+i}, 0')
    blk = [(hf, cb) for hf in range(2) for cb in range(10)]
    def rd(i):
        hf, cb = blk[i]; P.wait_tag(f'x{hf}_{cb}'); P(f'ds_read_b128 {q4(B+4*(i%4))}, v{vrd} offset:{XT + (hf*10+cb)*1024}')
    rd(0); rd(1)
    for i in range(20):
        if i + 2 < 20: rd(i+2)
        hf = blk[i][0]
        for j in range(4):
            r = B + 4*(i % 4) + j
            P(f'v_dot2c_f32_bf16 v{sacc+2*hf}, v{r}, v{ones}'); P(f'v_dot2c_f32_bf16 v{sacc+2*hf+1}, v{r}, v{r}')
    st(P, 's1_x')
    for mod in ('quad_perm:[1,0,3,2]', 'quad_perm:[2,3,0,1]', 'row_half_mirror'):
        for i in range(4): P(f'v_add_f32_dpp v{sacc+i}, v{sacc+i}, v{sacc+i} {mod} row_mask:0xf bank_mask:0xf')
    P(f'v_and_b32 v{t0}, 4, v0'); P(f'v_cmp_eq_u32 vcc, 0, v{t0}')
    P(f'v_cndmask_b32 v{t1}, v{sacc+2}, v{sacc}, vcc'); P(f'v_cndmask_b32 v{t2}, v{sacc+3}, v{sacc+1}, vcc')
    P(f'v_mul_f32 v{t1}, {fl(1/640)}, v{t1}'); P(f'v_mul_f32 v{t2}, {fl(1/640)}, v{t2}')
    P(f'v_fma_f32 v{t2}, -v{t1}, v{t1}, v{t2}'); P(f'v_max_f32 v{t2}, 0, v{t2}')
    P(f'v_cvt_pk_bf16_f32 v{rec}, -v{t1}, -v{t1}')
    P(f'v_cvt_pk_bf16_f32 v{t2}, v{t2}, v{t2}'); P(f'v_and_b32 v{t2}, 0xffff0000, v{t2}'); P(f'v_add_f32 v{t2}, {fl(1e-5)}, v{t2}')
    P(f'v_cvt_pk_bf16_f32 v{t2}, v{t2}, v{t2}'); P(f'v_and_b32 v{t2}, 0xffff0000, v{t2}'); P(f'v_sqrt_f32 v{t2}, v{t2}')
    P(f'v_cvt_pk_bf16_f32 v{t2}, v{t2}, v{t2}'); P(f'v_and_b32 v{t2}, 0xffff0000, v{t2}')
    P(f'v_rcp_f32 v{t3}, v{t2}'); P(f'v_mul_f32 v{rec+2}, v{t2}, v{t2}'); P(f'v_mul_f32 v{rec+1}, {fl(-LOG2E)}, v{t3}'); P(f'v_mov_b32 v{rec+3}, s{S_NONCE}')
    P(f'v_lshrrev_b32 v{t1}, 3, v0'); P(f'v_lshl_add_u32 v{t1}, v{t0}, 1, v{t1}'); P(f's_lshl_b32 s{S_T0}, s{S_WAVE}, 4'); P(f'v_add_u32 v{t1}, s{S_T0}, v{t1}')
    P(f'v_lshlrev_b32 v{t0}, 2, v{t1}'); P(f'v_add_u32 v{t0}, {SST}, v{t0}'); P(f'ds_write_b32 v{t0}, v{t3}')
    P(f'v_lshlrev_b32 v{t0}, 1, v{t1}'); P(f'v_add_u32 v{t0}, {SST+256}, v{t0}'); P(f'ds_write_b16 v{t0}, v{rec}')
    P(f'v_lshlrev_b32 v{t0}, 4, v{t1}'); P(f's_lshl_b32 s{S_T0}, s{sG}, 10'); P(f's_add_u32 s{S_T0}, s{S_T0}, {WS_STAT}')
    P(f's_mov_b32 exec_lo, 0x11111111'); P(f's_mov_b32 exec_hi, 0x11111111')
    P(f'buffer_store_dwordx4 {q4(rec)}, v{t0}, s[{R_WS}:{R_WS+3}], s{S_T0} offen sc1', tag='stat')
    P(f's_mov_b64 exec, -1')
    P.wait(lg=0); P('s_barrier')
    RR = B; NM = B + 16; MP = B + 24; MS = B + 40; MU = B + 56; XF = B + 64; AC = B + 80
    P(f'v_lshrrev_b32 v{t0}, 1, v{C.g}'); P(f'v_and_b32 v{t1}, 1, v{C.g}'); P(f'v_lshlrev_b32 v{t0}, 2, v{t0}'); P(f'v_add_lshl_u32 v{t0}, v{t0}, v{t1}, 3')
    P(f'v_lshlrev_b32 v{t1}, 1, v{t0}'); P(f'v_add_u32 v{t1}, {SST}, v{t1}'); P(f'v_add_u32 v{t0}, {SST+256}, v{t0}')
    for ks in range(2):
        for q in range(2):
            P(f'ds_read_b128 {q4(RR+8*ks+4*q)}, v{t1} offset:{(32*ks+8*q)*4}')
            P(f'ds_read_b64 {q2(NM+4*ks+2*q)}, v{t0} offset:{(32*ks+8*q)*2}')
    seg = [(0, 0, 0, 0), (0, 5120, 0, 1), (1, 5120, 1, 0), (1, 0, 1, 1)]
    fr = [(tt, sg, ks) for tt in range(5) for sg in range(4) for ks in range(2)]
    def rdx(i):
        tt, sg, ks = fr[i]; mir, off, _, _ = seg[sg]
        for q in range(2): P(f'ds_read_b64_tr_b16 {q2(XF+4*(i%4)+2*q)}, v{va+2*tt+mir} offset:{XT + off + (4*ks+q)*10240}')
    rdx(0); rdx(1); rdx(2)
    for nt in range(2):
        for i in range(0, 16, 2): P(f'v_pk_mul_f32 {q2(M+16*nt+i)}, {q2(M+16*nt+i)}, {q2(RR+i)}')
        for i in range(8): P(f'v_cvt_pk_bf16_f32 v{MP+8*nt+i}, v{M+16*nt+2*i}, v{M+16*nt+2*i+1}')
        for i in range(8): P(f'v_xor_b32 v{MS+8*nt+i}, s{sSig}, v{MP+8*nt+i}')
    for i, (mm, ks) in enumerate([(MP, 0), (MP, 1), (MS, 0), (MS, 1)]):
        for nt in range(2): P(f'{MF} {q4(MU+4*nt)}, {q4(NM+4*ks)}, {q4(mm+8*nt+4*ks)}, {q4(MU+4*nt) if i else 0}')
    st(P, 's1_mprep')
    AC2 = M
    TM = M + 16
    fillq = []
    def epi(tt):
        ac = AC if tt % 2 == 0 else AC2; ops = []
        for nt in range(2):
            a1 = ac + 4*nt; a2 = ac + 8 + 4*nt; tm = TM + 8*nt
            for r in range(4): ops.append(f'v_add_f32 v{tm+r}, v{a1+r}, v{a2+3-r}')
            for r in range(4): ops.append(f'v_sub_f32 v{tm+4+r}, v{a1+r}, v{a2+3-r}')
            for r in range(4): ops.append(f'v_cvt_pk_bf16_f32 v{tm+r}, v{tm+2*r}, v{tm+2*r+1}')
            for ty in range(2): ops.append(f'ds_write_b64 v{stw2 if tt & 1 else C.stw}, {q2(tm+2*ty)} offset:{nt*16*ROWP + ty*320 + (tt>>1)*64}')
        return ops
    for i, (tt, sg, ks) in enumerate(fr):
        mir, off, acc, sig = seg[sg]; ac = (AC if tt % 2 == 0 else AC2) + 8*acc
        first = (sg in (0, 2) and ks == 0)
        for nt in range(2):
            P(f'{MF} {q4(ac+4*nt)}, {q4(XF+4*(i%4))}, {q4((MS if sig else MP)+8*nt+4*ks)}, {q4(MU+4*nt) if first else q4(ac+4*nt)}')
        if i + 3 < len(fr): rdx(i+3)
        if i % 8 == 1 and tt: fillq += epi(tt-1)
        for _ in range(5):
            if fillq: P(fillq.pop(0))
    assert not fillq
    for op in epi(4): P(op)
    P(f'v_mul_u32_u24 v{t0}, 81920, v{C.g}'); P(f'v_bfe_u32 v{t1}, v0, 3, 1'); P(f'v_mul_u32_u24 v{t1}, 20480, v{t1}'); P(f'v_and_b32 v{t2}, 7, v0')
    P(f'v_add_u32 v{t0}, v{t0}, v{t1}'); P(f'v_lshl_add_u32 v{t0}, v{t2}, 4, v{t0}')
    P(f's_mul_i32 s{sO1}, s{S_WAVE}, {8*81920}'); P(f's_mul_i32 s{S_T0}, s{sP}, 40960'); P(f's_mul_i32 s{S_T1}, s{sG}, 640')
    P(f's_add_u32 s{sO1}, s{sO1}, s{S_T0}'); P(f's_add_u32 s{sO1}, s{sO1}, s{S_T1}'); P(f's_add_u32 s{sO1}, s{sO1}, {WS_T}')
    P.wait(lg=0); P('s_barrier')
    st(P, 's1_dft')
    stage_out(P, C, t0, sO1, 4*81920, B, 'T')
    st(P, 's1_stored')
    V.release(mk)

F1A = 0; F2A = 120; A2A = 0
WR = 128
def gen_f(P, C, which, B):
    t0, t1, t2, t3 = C.t0, C.t1, C.t2, C.t3
    base = F1A if which == 1 else F2A
    dl, ph, tw = B, B+1, B+2
    X = B + 4
    PK = B + 28
    if which == 2:
        P(f'v_cmp_eq_u32 vcc, 3, v{C.g}'); P(f's_lshl_b32 s{S_T0}, s{sP}, 23'); P(f's_add_u32 s{S_T0}, s{S_T0}, 0x3f000000')
        P(f'v_mov_b32 v{t3}, s{S_T0}'); P(f'v_cndmask_b32 v{t3}, 1.0, v{t3}, vcc')
    for tk in range(3):
        P(f's_add_u32 s{S_T0}, s{sTb}, {tk}'); P(f's_lshl_b32 s{S_T0}, s{S_T0}, 4'); P(f'v_add_u32 v{t0}, s{S_T0}, v{C.n}')
        if which == 1:
            P(f'v_lshl_add_u32 v{t0}, v{t0}, 1, s{sK0}'); P(f'v_cvt_f32_u32 v{t0}, v{t0}'); P(f'v_mul_f32 v{dl}, {fl(1/640)}, v{t0}')
            P(f'v_add_f32 v{t1}, 0.5, v{C.g4f}'); P(f'v_mul_f32 v{ph}, v{dl}, v{t1}')
        else:
            P(f'v_cvt_f32_u32 v{t0}, v{t0}'); P(f'v_add_f32 v{t0}, 0.5, v{t0}'); P(f'v_mul_f32 v{dl}, {fl(1/320)}, v{t0}')
            P(f'v_cvt_f32_u32 v{t1}, s{sK0}'); P(f'v_fma_f32 v{t1}, v{t1}, 0.5, v{C.g4f}'); P(f'v_mul_f32 v{ph}, v{dl}, v{t1}')
        P(f'v_mul_f32 v{t2}, {fl(16.0)}, v{dl}'); P(f'v_cos_f32 v{t2}, v{t2}')
        for u in range(10):
            x = X + 8*(u % 3)
            if u < 2:
                for i in range(4): P(f'v_fmamk_f32 v{x+4+i}, v{dl}, {fl(float(16*u+i))}, v{ph}')
                for i in range(4): P(f'v_cos_f32 v{x+i}, v{x+4+i}')
                for i in range(4): P(f'v_sin_f32_e64 v{x+4+i}, -v{x+4+i}')
                if u == 0: P(f'v_add_f32 v{tw}, v{t2}, v{t2}'); P(f'v_add_f32 v{tw+1}, v{t2}, v{t2}')
                if which == 2:
                    for i in range(8): P(f'v_mul_f32 v{x+i}, {fl(2/640)}, v{x+i}')
            else:
                x1 = X + 8*((u-1) % 3); x2 = X + 8*((u-2) % 3)
                for i in range(0, 8, 2): P(f'v_pk_fma_f32 {q2(x+i)}, {q2(tw)}, {q2(x1+i)}, {q2(x2+i)} neg_lo:[0,0,1] neg_hi:[0,0,1]')
            if which == 2 and u == 9:
                P(f'v_mul_f32 v{x+3}, v{x+3}, v{t3}'); P(f'v_mul_f32 v{x+7}, v{x+7}, v{t3}')
            pk = PK + 4*(u & 1)
            for i in range(4): P(f'v_cvt_pk_bf16_f32 v{pk+i}, v{x+2*i}, v{x+2*i+1}')
            for i in range(4):
                ty = i >> 1
                P(f'v_accvgpr_write_b32 a{base + ((ty*3+tk)*5 + (u>>1))*4 + 2*(u&1) + (i&1)}, v{pk+i}')
            bg(P, C, 2 if u < 2 else 1)

def mid_consts(P, C):
    P(f's_cmp_eq_u32 s{sG}, 0'); P(f's_cselect_b32 s{sFs}, 32, 64'); P(f's_cselect_b32 s{sG0}, 0xffff, 0'); P(f's_mov_b32 s{sG0+1}, 0')

def gen_a2(P, C, B):
    t0, t1, t2, t3 = C.t0, C.t1, C.t2, C.t3
    X = B; PK = B + 8; F = B + 12; O = B + 13; MK = B + 14; AD = B + 15
    P(f's_lshl_b32 s{S_T0}, s{S_WAVE}, 11'); P(f's_add_u32 s{S_T0}, s{S_T0}, {A2B}'); P(f'v_add_u32 v{AD}, s{S_T0}, v{C.lin}')
    P(f's_lshr_b32 s{S_T2}, s{S_WAVE}, 1'); P(f's_and_b32 s{S_T1}, s{S_WAVE}, 1'); P(f's_lshl_b32 s{S_T1}, s{S_T1}, 4')
    P(f'v_add_u32 v{t0}, s{S_T1}, v{C.n}')
    P(f'v_cvt_f32_u32 v{t3}, s{S_T2}'); P(f'v_mul_f32 v{t3}, {fl(0.25)}, v{t3}')
    P(f's_cmp_eq_u32 s{sG}, 0'); P(f's_cselect_b32 s{S_T3}, 0, {fl(0.25)}')
    def frag(idx, andmask):
        for j in range(8): P(f'v_fmamk_f32 v{X+j}, v{F}, {fl(float(16*(j>>2)+(j&3)))}, v{O}')
        if idx == 9: P(f'v_cndmask_b32 v{X}, v{X}, v{t1}, s[{sG0}:{sG0+1}]')
        for j in range(8): P(f'v_cos_f32 v{X+j}, v{X+j}')
        for j in range(4): P(f'v_cvt_pk_bf16_f32 v{PK+j}, v{X+2*j}, v{X+2*j+1}')
        for j in range(4): P(f'v_and_b32 v{PK+j}, {andmask}, v{PK+j}')
        P(f'ds_write_b128 v{AD}, {q4(PK)} offset:{(idx & 1)*1024 + (idx >> 3)*8192}')
        bg(P, C, 2)
    P(f'v_mul_u32_u24 v{t1}, s{sFs}, v{t0}'); P(f'v_add_u32 v{t1}, s{sG}, v{t1}')
    P(f'v_cmp_eq_u32 vcc, 0, v{t1}'); P(f's_lshl_b32 s{S_T0}, s{S_T2}, 10'); P(f'v_mov_b32 v{t2}, s{S_T0}')
    P(f'v_cndmask_b32 v{t1}, v{t1}, v{t2}, vcc'); P(f'v_cndmask_b32 v{t2}, v{t3}, 0, vcc')
    P(f'v_cvt_f32_u32 v{t1}, v{t1}'); P(f'v_mul_f32 v{F}, {fl(1/2048)}, v{t1}')
    P(f'v_fma_f32 v{O}, v{F}, v{C.g4f}, -v{t2}')
    P(f's_cmp_eq_u32 s{sG}, 0'); P(f's_cselect_b32 s{S_T0}, 0, -1')
    P(f'v_and_b32 v{MK}, 1, v{t0}'); P(f'v_add_u32 v{MK}, -1, v{MK}')
    P(f'v_not_b32 v{t1}, v{MK}'); P(f'v_or_b32 v{MK}, s{S_T0}, v{MK}')
    frag(0, f'v{MK}')
    P(f'v_or_b32 v{MK}, s{S_T0}, v{t1}'); P(f'v_add_f32 v{O}, s{S_T3}, v{O}')
    frag(1, f'v{MK}')
    P(f'v_cvt_f32_u32 v{t0}, v{t0}'); P(f'v_mul_f32 v{t1}, 0.5, v{t0}'); P(f'v_mul_f32 v{t0}, {fl(1/2048)}, v{t0}')
    P(f'v_cvt_f32_u32 v{F}, s{sFs}'); P(f'v_mul_f32 v{F}, v{F}, v{t0}')
    P(f'v_cvt_f32_u32 v{O}, s{sG}'); P(f'v_mul_f32 v{O}, v{O}, v{t0}'); P(f'v_fmac_f32 v{O}, v{F}, v{C.g4f}')
    P(f'v_mul_f32 v{t3}, 4.0, v{t3}'); P(f'v_fmac_f32 v{O}, s{S_T3}, v{t3}')
    P(f's_lshl_b32 s{S_T1}, s{S_T2}, 4'); P(f's_lshl_b32 s{sMask}, 0xffff, s{S_T1}'); P(f's_or_b32 s{sMask}, s{sMask}, s{S_T0}')
    frag(8, f's{sMask}')
    P(f'v_add_f32 v{O}, {fl(-0.25)}, v{O}')
    frag(9, f's{sMask}')

def mid_wload(P, C):
    V = C.V; t0, t1, t2 = C.t0, C.t1, C.t2
    vp, vn, vn0 = V(), V(), V()
    P(f's_mul_i32 s{S_T0}, s{sFs}, 642')
    for i, x in enumerate([0, 1, 2, 3, 16, 17, 18, 19]): P(f's_mul_i32 s{sW+i}, s{S_T0}, {x}')
    P(f's_lshl_b32 s{S_T1}, s{sTb}, 5'); P(f's_add_u32 s{S_T1}, s{S_T1}, s{sK0}'); P(f's_lshl_b32 s{S_T1}, s{S_T1}, 1')
    P(f'v_lshl_add_u32 v{t0}, v{C.n}, 2, s{S_T1}')
    P(f's_lshl_b32 s{S_T0}, s{S_T0}, 2'); P(f'v_mul_u32_u24 v{t1}, s{S_T0}, v{C.g}')
    P(f's_mul_i32 s{S_T1}, s{sG}, 642'); P(f'v_add3_u32 v{vp}, v{t0}, v{t1}, s{S_T1}')
    P(f's_sub_u32 s{S_T1}, {2048*642}, s{S_T1}'); P(f's_sub_u32 s{S_T1}, s{S_T1}, s{sW+7}')
    P(f'v_sub_u32 v{vn}, v{t0}, v{t1}'); P(f'v_add_u32 v{vn}, s{S_T1}, v{vn}')
    P(f'v_subrev_u32 v{t0}, {1024*642}, v{vn}'); P(f'v_cndmask_b32 v{vn0}, v{vn}, v{t0}, s[{sG0}:{sG0+1}]')
    for i in range(96): P(f'v_mov_b32 v{WR+i}, 0')
    ops = []
    for tk in range(3):
        for x in range(8):
            for c in range(4):
                R = R_A if c % 2 == 0 else R_B
                vo = vp if c < 2 else (vn0 if x == 0 else vn); so = sW + (x if c < 2 else 7 - x)
                ops.append(f'buffer_load_short_d16_hi v{WR + tk*32 + c*8 + x}, v{vo}, s[{R}:{R+3}], s{so} offen offset:{tk*64}')
    return ops

def mid_issue(P, C):
    V = C.V; t0, t1, t2 = C.t0, C.t1, C.t2
    P(f'v_lshrrev_b32 v{t0}, 3, v0'); P(f'v_and_b32 v{t1}, 7, v0'); P(f'v_xor_b32 v{t1}, v{t1}, v{C.g}')
    P(f'v_mul_u32_u24 v{t0}, 640, v{t0}'); P(f'v_lshl_add_u32 v{t0}, v{t1}, 4, v{t0}'); P(f'v_xor_b32 v{t1}, 64, v{t0}')
    P(f's_lshl_b32 s{S_T0}, s{sG}, 1'); P(f's_add_u32 s{S_T0}, s{S_T0}, s{sP}'); P(f's_lshl_b32 s{S_T0}, s{S_T0}, 2'); P(f's_add_u32 s{S_T0}, s{S_T0}, s{S_WAVE}')
    P(f's_mul_i32 s{sO1}, s{S_T0}, 10240'); P(f's_add_u32 s{sO1}, s{sO1}, {WS_T}')
    P(f's_mul_i32 s{S_T1}, s{S_WAVE}, 10240')
    for hf in range(2):
        for c in range(5):
            P(f's_add_u32 m0, s{S_T1}, {XT + (hf*5+c)*1024 - c*128}')
            P(f'buffer_load_dwordx4 v{t1 if hf else t0}, s[{R_WS}:{R_WS+3}], s{sO1} offen offset:{c*128} sc1 lds', tag='X')
        if hf == 0: P(f's_add_u32 s{sO1}, s{sO1}, 5120')

def mid_main(P, C, st):
    V = C.V; t0, t1, t2, t3 = C.t0, C.t1, C.t2, C.t3
    vx = V(2); vz = V(3); vzr = V(); vy = V(2)
    Y = V(48); XF = V(16); TM = V(16)
    AC = 224
    P(f'v_and_b32 v{t0}, 7, v0'); P(f'v_lshlrev_b32 v{t0}, 7, v{t0}'); P(f'v_bfe_u32 v{t1}, v0, 3, 1'); P(f'v_mul_u32_u24 v{t1}, 5120, v{t1}')
    P(f'v_bfe_u32 v{t2}, v0, 1, 3'); P(f'v_xor_b32 v{t2}, v{t2}, v{C.g}'); P(f'v_lshlrev_b32 v{t2}, 4, v{t2}'); P(f'v_add3_u32 v{vx}, v{t0}, v{t1}, v{t2}')
    P(f'v_xor_b32 v{vx+1}, 64, v{vx}')
    for tk in range(3):
        P(f's_add_u32 s{S_T0}, s{sTb}, {tk}'); P(f's_and_b32 s{S_T1}, s{S_T0}, 1'); P(f's_lshr_b32 s{S_T0}, s{S_T0}, 1')
        P(f's_lshl_b32 s{S_T0}, s{S_T0}, 10'); P(f's_lshl_b32 s{S_T1}, s{S_T1}, 3'); P(f's_add_u32 s{S_T0}, s{S_T0}, s{S_T1}'); P(f's_add_u32 s{S_T0}, s{S_T0}, {ZB}')
        P(f'v_add_u32 v{vz+tk}, s{S_T0}, v{C.lin}')
    P(f'v_add_u32 v{vzr}, {ZB}, v{C.lin}')
    P(f'v_mul_u32_u24 v{t0}, {ROWP}, v{C.n}'); P(f'v_lshlrev_b32 v{t1}, 3, v{C.g}'); P(f's_lshl_b32 s{S_T0}, s{sTb}, 5')
    P(f's_add_u32 s{S_T1}, s{S_T0}, {STG}'); P(f'v_add3_u32 v{vy}, v{t0}, v{t1}, s{S_T1}')
    P(f's_sub_u32 s{S_T1}, {STG + 632 - 64}, s{S_T0}'); P(f'v_sub_u32 v{t0}, v{t0}, v{t1}'); P(f'v_add_u32 v{vy+1}, s{S_T1}, v{t0}')
    P(f'v_add_u32 v{t3}, {A2B}, v{C.lin}')
    P.wait_tag('X'); P.wait(lg=0); P('s_barrier')
    st(P, 'mid_x')
    fr = [(ty, rt, ks) for ty in range(2) for rt in range(4) for ks in range(5)]
    def rdx(i):
        ty, rt, ks = fr[i]; sg = 5*ty + ks
        P(f'ds_read_b128 {q4(XF+4*(i%4))}, v{vx+(sg&1)} offset:{XT + (10*rt + (sg>>1))*1024}')
    rdx(0); rdx(1); rdx(2)
    fillq = []
    def cvt1(ty, rt):
        ac = AC + 12*(rt & 1)
        return [f'v_cvt_pk_bf16_f32 v{Y + (tk*2+ty)*8 + 2*rt + h}, v{ac+4*tk+2*h}, v{ac+4*tk+2*h+1}' for tk in range(3) for h in range(2)]
    for i, (ty, rt, ks) in enumerate(fr):
        ac = AC + 12*(rt & 1)
        for tk in range(3):
            P(f'{MF} {q4(ac+4*tk)}, {q4(XF+4*(i%4))}, {q4(F1A+((ty*3+tk)*5+ks)*4, "a")}, {q4(ac+4*tk) if ks else 0}')
        if i + 3 < len(fr): rdx(i+3)
        bg(P, C)
        if ks == 1 and i > 1: fillq += cvt1(*fr[i-5][:2])
        for _ in range(2):
            if fillq: P(fillq.pop(0))
        if i >= 24 and i < 32: P(f'ds_read_b128 {q4(A2A+4*(i-24), "a")}, v{t3} offset:{(i-24)*1024}')
        if i >= 32 and i < 39: P(f'ds_read_b128 {q4(A2A+4*(i-24), "a")}, v{t3} offset:{(i-24)*1024}')
    P(f'ds_read_b128 {q4(A2A+60, "a")}, v{t3} offset:{15*1024}')
    for op in cvt1(1, 3): P(op)
    st(P, 'mid_i')
    def w(tk, c, x): return WR + tk*32 + c*8 + x
    for tk in range(3):
        for ks in range(2):
            for ty in range(2):
                for mt in range(4):
                    ac = AC + 16*ty + 4*mt
                    P(f'{MF} {q4(ac)}, {q4(A2A+(2*mt+ks)*4, "a")}, {q4(Y+(tk*2+ty)*8+4*ks)}, {q4(ac) if ks else 0}')
                bg(P, C)
        assert len(C.bg) <= 32*(2-tk), len(C.bg)
        BP = Y + tk*16
        for x in range(0, 8, 2):
            cr, ci, sr, si = AC + x, AC + 16 + x, AC + 8 + x, AC + 24 + x
            pr, pi_, nr, ni = (q2(w(tk, c, x)) for c in range(4))
            fpr, fpi, fnr, fni, gpr, gpi, gnr, gni = (q2(TM + 2*i) for i in range(8))
            if x == 0:
                sp = XF
                P(f'v_mul_f32 v{sp}, v{cr}, v{w(tk,0,0)}'); P(f'v_mul_f32 v{sp+1}, v{cr}, v{w(tk,1,0)}')
                P(f'v_mul_f32 v{sp+2}, v{sr}, v{w(tk,2,0)}'); P(f'v_mul_f32 v{sp+3}, v{sr}, v{w(tk,3,0)}')
                P(f'v_fma_f32 v{sp}, -v{ci}, v{w(tk,1,0)}, v{sp}'); P(f'v_fma_f32 v{sp+1}, v{ci}, v{w(tk,0,0)}, v{sp+1}')
                P(f'v_fma_f32 v{sp+2}, -v{si}, v{w(tk,3,0)}, v{sp+2}'); P(f'v_fma_f32 v{sp+3}, v{si}, v{w(tk,2,0)}, v{sp+3}')
            N1 = 'neg_lo:[0,1] neg_hi:[0,1]'
            P(f'v_pk_add_f32 {fpr}, {q2(cr)}, {q2(si)}'); P(f'v_pk_add_f32 {fpi}, {q2(ci)}, {q2(sr)} {N1}')
            P(f'v_pk_add_f32 {fnr}, {q2(cr)}, {q2(si)} {N1}'); P(f'v_pk_add_f32 {fni}, {q2(ci)}, {q2(sr)}')
            P(f'v_pk_mul_f32 {gpr}, {fpr}, {pr}'); P(f'v_pk_mul_f32 {gpi}, {fpr}, {pi_}')
            P(f'v_pk_mul_f32 {gnr}, {fnr}, {nr}'); P(f'v_pk_mul_f32 {gni}, {fnr}, {ni}')
            N0 = 'neg_lo:[1,0,0] neg_hi:[1,0,0]'
            P(f'v_pk_fma_f32 {gpr}, {fpi}, {pi_}, {gpr} {N0}'); P(f'v_pk_fma_f32 {gpi}, {fpi}, {pr}, {gpi}')
            P(f'v_pk_fma_f32 {gnr}, {fni}, {ni}, {gnr} {N0}'); P(f'v_pk_fma_f32 {gni}, {fni}, {nr}, {gni}')
            P(f'v_pk_add_f32 {fpr}, {gpr}, {gnr}'); P(f'v_pk_add_f32 {fpi}, {gpi}, {gni}')
            P(f'v_pk_add_f32 {fnr}, {gni}, {gpi} {N1}'); P(f'v_pk_add_f32 {fni}, {gpr}, {gnr} {N1}')
            if x == 0:
                for i in range(4): P(f'v_cndmask_b32 v{TM+2*i}, v{TM+2*i}, v{XF+i}, s[{sG0}:{sG0+1}]')
            for i, (ty, cs) in enumerate([(0, 0), (1, 0), (0, 1), (1, 1)]):
                P(f'v_cvt_pk_bf16_f32 v{BP + ty*8 + cs*4 + x//2}, v{TM+2*i}, v{TM+2*i+1}')
            bg(P, C)
        for cs in range(2):
            for ty in range(2):
                for nt in range(4):
                    ac = AC + 16*ty + 4*nt
                    P(f'{MF} {q4(ac)}, {q4(BP+ty*8+cs*4)}, {q4(A2A+32+(2*nt+cs)*4, "a")}, {q4(ac) if cs else 0}')
        for ty in range(2):
            for nt in range(4):
                ac = AC + 16*ty + 4*nt; tm = TM + 2*(4*ty+nt)
                P(f'v_cvt_pk_bf16_f32 v{tm}, v{ac}, v{ac+1}'); P(f'v_cvt_pk_bf16_f32 v{tm+1}, v{ac+2}, v{ac+3}')
                P(f'ds_write_b64 v{vz+tk}, {q2(tm)} offset:{(ty*4+nt)*5120}')
    P.wait(lg=0); P('s_barrier')
    st(P, 'mid_iii')
    fr = [(nt, ty, ks) for nt in range(4) for ty in range(2) for ks in range(5)]
    def rdz(i):
        nt, ty, ks = fr[i]
        P(f'ds_read_b128 {q4(XF+4*(i%4))}, v{vzr} offset:{(ty*4+nt)*5120 + ks*1024}')
    rdz(0); rdz(1); rdz(2)
    A4 = WR
    def epi(nt):
        ac = A4 + 24*(nt & 1); ops = []
        for td in range(3):
            e = ac + 4*td; o = ac + 12 + 4*td; tm = TM + 8*(td & 1)
            for r in range(4): ops.append(f'v_add_f32 v{tm+r}, v{e+r}, v{o+r}')
            for r in range(4): ops.append(f'v_sub_f32 v{tm+7-r}, v{e+r}, v{o+r}')
            for r in range(4): ops.append(f'v_cvt_pk_bf16_f32 v{tm+r}, v{tm+2*r}, v{tm+2*r+1}')
            for r in range(2): ops.append(f'v_xor_b32 v{tm+2+r}, s{sSig}, v{tm+2+r}')
            ops.append(f'ds_write_b64 v{vy}, {q2(tm)} offset:{nt*16*ROWP + td*32}')
            ops.append(f'ds_write_b64 v{vy+1}, {q2(tm+2)} offset:{nt*16*ROWP + (2-td)*32}')
        return ops
    for i, (nt, ty, ks) in enumerate(fr):
        ac = A4 + 24*(nt & 1) + 12*ty
        for td in range(3):
            P(f'{MF} {q4(ac+4*td)}, {q4(F2A+((ty*3+td)*5+ks)*4, "a")}, {q4(XF+4*(i%4))}, {q4(ac+4*td) if ks else 0}')
        if i + 3 < len(fr): rdz(i+3)
        if i % 10 == 1 and nt: fillq += epi(nt-1)
        for _ in range(6):
            if fillq: P(fillq.pop(0))
    assert not fillq
    for op in epi(3): P(op)
    P(f'v_lshrrev_b32 v{t0}, 3, v0'); P(f'v_mul_u32_u24 v{t0}, 81920, v{t0}'); P(f'v_and_b32 v{t2}, 7, v0'); P(f'v_lshl_add_u32 v{t0}, v{t2}, 4, v{t0}')
    P(f's_and_b32 s{S_T0}, s{S_WAVE}, 1'); P(f's_mul_i32 s{sO1}, s{S_T0}, {16*81920}'); P(f's_mul_i32 s{S_T0}, s{sP}, 40960'); P(f's_add_u32 s{sO1}, s{sO1}, s{S_T0}')
    P(f's_lshr_b32 s{S_T0}, s{S_WAVE}, 1'); P(f's_lshl_b32 s{S_T1}, s{sG}, 1'); P(f's_add_u32 s{S_T0}, s{S_T0}, s{S_T1}'); P(f's_mul_i32 s{S_T0}, s{S_T0}, 640')
    P(f's_add_u32 s{sO1}, s{sO1}, s{S_T0}'); P(f's_add_u32 s{sO1}, s{sO1}, {WS_V}')
    P.wait(lg=0); P('s_barrier')
    st(P, 'mid_iv')
    stage_out(P, C, t0, sO1, 8*81920, Y, 'V')
    st(P, 'mid_stored')

def role_s1(P, st):
    C = spec_setup(P)
    s1_issue(P, C); s1_genm(P, C, 224)
    st(P, 's1_gen')
    s1_main(P, C, st, 224, 128)
def role_mid(P, st):
    C = spec_setup(P); mid_consts(P, C)
    mid_issue(P, C)
    for op in mid_wload(P, C): P(op)
    st(P, 'mid_issued')
    gen_f(P, C, 1, 64); gen_a2(P, C, 64); gen_f(P, C, 2, 64)
    st(P, 'mid_gen')
    mid_main(P, C, st)

def role_spec(P, st, name):
    C = spec_setup(P); mid_consts(P, C); V = C.V
    t0, t1, t2, t3 = C.t0, C.t1, C.t2, C.t3
    s1_issue(P, C)
    srd(P, R_A, P_WR, WFB); srd(P, R_B, P_WI, WFB); srd(P, R_C, P_WD, WDB)
    if opt('wpf', 1):
        P(f's_sub_u32 s{S_T0}, s2, 192'); P(f's_lshl_b32 s{S_T0}, s{S_T0}, 2'); P(f's_add_u32 s{S_T0}, s{S_T0}, s{S_WAVE}')
        P(f's_mul_i32 s{S_T1}, s{S_T0}, {41*128}'); P(f'v_min_u32 v{t0}, 40, v0'); P(f'v_lshlrev_b32 v{t0}, 7, v{t0}')
        P(f'buffer_load_dword v124, v{t0}, {rs(R_A)}, s{S_T1} offen'); P(f'buffer_load_dword v124, v{t0}, {rs(R_B)}, s{S_T1} offen')
        P(f's_lshl_b32 s{S_T1}, s{S_T0}, 9'); P(f's_add_u32 s{S_T1}, s{S_T1}, {224*8192}'); P(f'v_and_b32 v{t0}, 3, v0'); P(f'v_lshlrev_b32 v{t0}, 7, v{t0}')
        P(f'buffer_load_dword v124, v{t0}, {rs(R_C)}, s{S_T1} offen')
    s1_genm(P, C, 224)
    gen_f(P, C, 1, 64)
    nonce(P)
    st(P, 'gen1')
    s1_main(P, C, st, 224, 128)
    wl = mid_wload(P, C)
    P(f's_lshl_b32 s{S_T0}, s{sG}, 1'); P(f's_add_u32 s{S_T0}, s{S_T0}, s{sP}'); P(f's_lshl_b32 s{S_T0}, s{S_T0}, 2'); P(f's_add_u32 s{S_T0}, s{S_T0}, s{S_WAVE}')
    P(f's_lshl_b32 s{S_T0}, s{S_T0}, 7'); P(f's_add_u32 s{sO2}, s{S_T0}, {WS_FT}')
    gen_a2(P, C, 64)
    P.wait_tag('T'); set_flag(P, t0, sO2); P(f's_add_u32 s{sO2}, s{sO2}, {WS_FV - WS_FT}')
    st(P, 'flagT')
    C.bg = wl
    gen_f(P, C, 2, 64)
    st(P, 'gen2')
    P(f's_and_b32 s{S_T0}, s{S_WAVE}, 1'); P(f's_lshl_b32 s{S_T0}, s{S_T0}, 7'); P(f's_lshl_b32 s{S_T1}, s{sP}, 2'); P(f's_add_u32 s{S_T0}, s{S_T0}, s{S_T1}')
    P(f's_lshr_b32 s{S_T1}, s{sG}, 3'); P(f's_add_u32 s{S_T0}, s{S_T0}, s{S_T1}'); P(f's_lshl_b32 s{S_T0}, s{S_T0}, 7'); P(f's_add_u32 s{S_T2}, s{S_T0}, {WS_FT}')
    P(f'v_lshlrev_b32 v{t2}, 10, v{C.n}')
    ld = f'buffer_load_dword v{t3}, v{t2}, {rs(R_WS)}, s{S_T2} offen sc1'
    P(ld); check(P, [ld], [t3])
    st(P, 'Tseen')
    mid_issue(P, C)
    mid_main(P, C, st)
    P.wait_tag('V'); set_flag(P, t0, sO2)
    if st.on: P.wait_all(); st(P, 'end'); st.flush(P, 1)
    P('s_endpgm')
```

```python
import sys, json
from common import *
from asmlib import kernel_text, assemble
import ffn, spec
KN = 'recurrent_scan__spectral_gfnet__swiglu_ffn__prompt_kernel'
def build(diag, out, aslist):
    P = Prog(); n = 'k'; names = {}
    prologue(P, n, fused=True, code_end='k_end')
    P(f's_cmp_ge_u32 s{S_R}, 24'); P(f's_cbranch_scc1 k_spec')
    vm, lg, hist = list(P.vm), list(P.lg), list(P.hist)
    st = Stamper(diag, 127); st(P, 'start'); ffn.role_ffn(P, st, n); names['ffn'] = st.names
    P.raw('.p2align 6'); P('k_spec:'); P.vm, P.lg, P.hist = vm, lg, hist
    st = Stamper(diag, 127); st(P, 'start'); spec.role_spec(P, st, n); names['spec'] = st.names
    P('k_end:')
    print(P.count, 'nops', P.nops)
    hdr = open('header.txt').read()
    t = hdr + (f'; @launch kernel={KN} grid=(256,1,1) block=(256,1,1) lds=163840\n' if aslist else '; @launch grid=(256,1,1) block=(256,1,1) lds=163840\n')
    t += '.amdgcn_target "amdgcn-amd-amdhsa--gfx950"\n' + kernel_text(KN, P.text(), vgpr=256, agpr=256)
    open(out + '.s', 'w').write(t); assemble(out + '.s', out + '.co')
    json.dump(names, open(out + '.json', 'w'))
if __name__ == '__main__':
    build(int(sys.argv[1]), sys.argv[2], int(sys.argv[3]) if len(sys.argv) > 3 else 1)
```

```python
from prog import *
import os
OPT = dict(kv.split('=') if '=' in kv else (kv, '1') for kv in os.environ.get('OPT', '').split(',') if kv)
def opt(k, d): return type(d)(OPT.get(k, d))
WS_GEN = 0x0
WS_STAT = 0x10000
WS_FT = 0x20000
WS_FV = 0x28000
WS_FH = 0x30000
WS_T = 0x100000
WS_V = 0x400000
WS_H = 0x700000
WS_STAMP = 0xD00000
WS_SIZE = 0xE00000
XB = 2048*1280; WGB = 640*3072; WDB = 1536*1280; WFB = 2048*642
S_WAVE = 3
P_X, P_WR, P_WI, P_WG, P_WU, P_WD, P_OUT, P_DBG, P_WS = 4, 6, 8, 12, 14, 16, 18, 20, 22
R_X, R_WS, R_A, R_B, R_C, R_D = 24, 28, 32, 36, 40, 44
S_XCD, S_R = 48, 49
S_T0, S_T1, S_T2, S_T3 = 50, 51, 52, 53
S_NONCE, S_SPIN = 54, 55
S_FREE = 56
S_STAMP = 87
LOG2E = 1.4426950408889634
SPIN_MAX = 1 << 16
import struct
def f2u(x): return struct.unpack('<I', struct.pack('<f', x))[0]
def fl(x): return hex(f2u(x))
def q4(r, k='v'): return f'{k}[{r}:{r+3}]'
def q2(r, k='v'): return f'{k}[{r}:{r+1}]'
def rs(r): return f's[{r}:{r+3}]'

def srd(P, r, ptr, nbytes, back=0):
    if back:
        P(f's_sub_u32 s{r}, s{ptr}, {back}'); P(f's_subb_u32 s{r+1}, s{ptr+1}, 0')
    else:
        P(f's_mov_b32 s{r}, s{ptr}'); P(f's_mov_b32 s{r+1}, s{ptr+1}')
    P(f's_mov_b32 s{r+2}, {nbytes+back}'); P(f's_mov_b32 s{r+3}, 0x20000')

def entry(P, name, nwg=256, code_end=None):
    P(f's_cmp_lt_u32 s2, {nwg}'); P(f's_cbranch_scc1 {name}_go'); P('s_endpgm'); P(f'{name}_go:')
    if opt('entry', 0):
        P('s_memrealtime s[90:91]'); P('s_memtime s[92:93]')
    P('s_load_dwordx16 s[4:19], s[0:1], 0'); P('s_load_dwordx4 s[20:23], s[0:1], 64')
    P(f's_and_b32 s{S_XCD}, s2, 7'); P(f's_lshr_b32 s{S_R}, s2, 3')
    P('v_lshrrev_b32 v1, 6, v0'); P(f'v_readfirstlane_b32 s{S_WAVE}, v1')
    P('v_and_b32 v0, 63, v0')
    if code_end and opt('cpf', 1):
        P('s_getpc_b64 s[60:61]'); P(f'{name}_pc:')
        P(f's_and_b32 s{S_T0}, s{S_R}, 7'); P(f's_lshl_b32 s{S_T0}, s{S_T0}, 2'); P(f's_add_u32 s{S_T0}, s{S_T0}, s{S_WAVE}'); P(f's_lshl_b32 s{S_T0}, s{S_T0}, 11')
        P(f'v_lshl_add_u32 v2, v0, 5, s{S_T0}'); P(f'v_min_u32 v2, {code_end}-{name}_pc-4, v2')
        P('v_mov_b32 v3, s61'); P('v_add_co_u32 v2, vcc, s60, v2'); P('v_addc_co_u32 v3, vcc, 0, v3, vcc')
        P('global_load_dword v125, v[2:3], off')

def args(P, fused=True):
    P.wait(lg=0)
    if fused: P(f's_load_dword s{S_NONCE}, s[{P_WS}:{P_WS+1}], {WS_GEN}')
    srd(P, R_X, P_X, XB); srd(P, R_WS, P_WS, WS_SIZE)
def prologue(P, name, nwg=256):
    entry(P, name, nwg); args(P, False)

def nonce(P):
    P.wait(lg=0)
    P(f's_mul_i32 s{S_NONCE}, s{S_NONCE}, 0x9E3779B1'); P(f's_add_u32 s{S_NONCE}, s{S_NONCE}, 0x7F4A7C15')

def set_flag(P, vz, soff):
    P(f'v_mov_b32 v{vz}, s{S_NONCE}'); P(f'v_mov_b32 v{vz+1}, 0')
    P('s_mov_b64 exec, 1')
    P(f'buffer_store_dword v{vz}, v{vz+1}, {rs(R_WS)}, s{soff} offen sc1', tag='flag')
    P('s_mov_b64 exec, -1')

def out_of_line(P, branch, body):
    slow = P.label('slow'); back = P.label('back')
    P(f'{branch} {slow}')
    Q = Prog(); Q.vm, Q.lg, Q.hist = list(P.vm), list(P.lg), list(P.hist); Q.nlab = P.nlab
    Q(f'{slow}:'); body(Q, back); Q('s_nop 4'); Q(f's_branch {back}')
    P.nlab = Q.nlab
    if not hasattr(P, 'tail'): P.tail = []
    P.tail += Q.out
    P(f'{back}:')
def flush_tail(P):
    P.out += getattr(P, 'tail', []); P.tail = []

def check(P, loads, regs, sleep=4):
    def cmp(P):
        P(f'v_cmp_ne_u32 vcc, s{S_NONCE}, v{regs[0]}')
        for r in regs[1:]:
            P(f'v_cmp_ne_u32 s[{S_T0}:{S_T0+1}], s{S_NONCE}, v{r}'); P(f's_or_b64 vcc, vcc, s[{S_T0}:{S_T0+1}]')
    def body(Q, back):
        rt = Q.label('rt')
        Q(f's_mov_b32 s{S_SPIN}, 0'); Q(f'{rt}:')
        for l in loads: Q(l)
        Q.wait(vm=0); cmp(Q); Q(f's_cbranch_vccz {back}')
        if sleep: Q(f's_sleep {sleep}')
        Q(f's_add_u32 s{S_SPIN}, s{S_SPIN}, 1'); Q(f's_cmp_lt_u32 s{S_SPIN}, {SPIN_MAX}'); Q(f's_cbranch_scc1 {rt}')
    cmp(P); out_of_line(P, 's_cbranch_vccnz', body)

class Stamper:
    def __init__(self, on, vreg): self.on = on; self.v = vreg; self.n = 0; self.names = []
    def __call__(self, P, name):
        if not self.on: return
        if self.n == 0 and opt('entry', 0):
            P(f'v_writelane_b32 v{self.v}, s90, 0'); P(f'v_writelane_b32 v{self.v}, s92, 32'); self.names.append('entry'); self.n = 1
        if len(P.lazy) >= 4: P.wait(lg=0)
        r = 94 + 4*(self.n & 1)
        P(f's_memrealtime s[{r}:{r+1}]'); P(f's_memtime s[{r+2}:{r+3}]')
        P.lazy += [f'v_writelane_b32 v{self.v}, s{r}, {self.n}', f'v_writelane_b32 v{self.v}, s{r+2}, {self.n+32}']
        self.names.append(name); self.n += 1
    def flush(self, P, vtmp, base=0):
        if not self.on: return
        P.wait(lg=0)
        P(f's_lshl_b32 s{S_STAMP+2}, s2, 2'); P(f's_add_u32 s{S_STAMP+2}, s{S_STAMP+2}, s{S_WAVE}')
        P(f's_lshl_b32 s{S_STAMP+2}, s{S_STAMP+2}, 8'); P(f's_add_u32 s{S_STAMP+2}, s{S_STAMP+2}, {WS_STAMP+base}')
        P(f'v_lshlrev_b32 v{vtmp}, 2, v0')
        P(f'buffer_store_dword v{self.v}, v{vtmp}, s[{R_WS}:{R_WS+3}], s{S_STAMP+2} offen')

def op_text(op): return op[0] if isinstance(op, tuple) else op
def op_cost(op):
    if callable(op): return 4
    mn = op_text(op).split()[0]
    if mn.startswith('ds_write_b128'): return 16
    if mn.startswith('ds_write'): return 12
    if mn.startswith('ds_') or mn.startswith('buffer') or mn.replace('_e64', '') in TRANS: return 8
    if mn.startswith('v_mfma'): return 32 if '32x32' in mn else 16
    return 4
def is_valu(op): return (not callable(op)) and op_text(op).startswith('v_')
class Weave:
    def __init__(self, P): self.P = P; self.q = []; self.m = []; self.debt = 0
    def emit(self, op):
        P = self.P; n0 = len(P.out)
        if callable(op): op()
        elif isinstance(op, tuple): P(op[0], tag=op[1])
        else: P(op)
        return op_cost(op) + 4*max(0, len(P.out) - n0 - 1)
    def mfma(self, text, must=(), nm=1, extra=0):
        c = self.emit(text); per = op_cost(text)
        left = per - 4 - (c - per) + extra - self.debt; first = True
        for op in must: left -= self.emit(op); first = False
        k = 0
        while self.m and k < nm and (left >= op_cost(self.m[0]) or op_cost(self.m[0]) == 4):
            op = self.m.pop(0); left -= self.emit(op); first = False
            if op_cost(op) > 4: k += 1
        while self.q:
            pen = 4 if (first and is_valu(self.q[0])) else 0
            cst = op_cost(self.q[0])
            if cst >= 16 and op_text(self.q[0]).startswith('v_mfma'):
                self.emit(self.q.pop(0)); left = cst - 4 + extra; first = True; continue
            if left < min(cst, 8) + pen: break
            left -= self.emit(self.q.pop(0)) + pen; first = False
        self.debt = 0
    def drain(self):
        while self.m: self.emit(self.m.pop(0))
        while self.q: self.emit(self.q.pop(0))

def hop(P, role):
    if not opt('hop', 1): return
    P('s_mov_b64 exec, 0')
    for w in range(1, 4): P(f's_cmp_eq_u32 s{S_WAVE}, {w}'); P(f's_cbranch_scc1 {role}_pg{w}')
    P(f's_branch {role}_pg0'); P(f'{role}_ret:'); P('s_mov_b64 exec, -1')
```

```python
from common import *
from g1 import silu_mul_ops
from g2 import gen_m1
NX = 4; NW = 4
XRING = 0; WRING = 65536
DS = [8, 9, 10, 11, 12, 13, 16, 17, 18, 19, 14, 15]
def dslot(sl): return 8192*DS[sl] if sl < 12 else 8192*(sl-12)
XS = 12*8192; VB = 16*8192
M32 = 'v_mfma_f32_32x32x16_bf16'
def q16(r): return f'v[{r}:{r+15}]'

def role_ffn(P, st, name):
    V = Alloc(1, 125); ACC = 128
    (sB, sJ, sA, sXo, sWo, sHo, sSt, sXl, sWl, sXoB, sFo, sE, sS2,
     sRp, sC, sHb, sDo, sDl, sJ0, sVo, sXo2, sSg0, sSg1, sH2, sH3, sD2, sFh, sFh2, sFh3, sFv, sDt) = range(S_FREE, S_FREE+31)
    W = Weave(P); emit = W.emit
    P(f's_and_b32 s{S_T0}, s{S_XCD}, 1'); P(f's_lshl_b32 s{S_T0}, s{S_T0}, 2'); P(f's_and_b32 s{S_T1}, s{S_R}, 3'); P(f's_add_u32 s{sB}, s{S_T0}, s{S_T1}')
    P(f's_lshr_b32 s{S_T0}, s{S_XCD}, 1'); P(f's_and_b32 s{sA}, s{S_T0}, 1'); P(f's_mul_i32 s{S_T0}, s{S_T0}, 6'); P(f's_lshr_b32 s{S_T1}, s{S_R}, 2'); P(f's_add_u32 s{sJ}, s{S_T0}, s{S_T1}')
    P(f's_lshr_b32 s{sE}, s{S_XCD}, 2')
    P(f's_lshl_b32 s{S_T0}, s{sB}, 2'); P(f's_lshl_b32 s{S_T1}, s{sA}, 1'); P(f's_add_u32 s{sS2}, s{S_T0}, s{S_T1}')
    P(f's_lshr_b32 s{S_T0}, s{S_WAVE}, 1'); P(f's_and_b32 s{S_T1}, s{S_WAVE}, 1'); P(f's_lshl_b32 s{S_T1}, s{S_T1}, 10')
    P(f's_add_u32 s{sXo}, s{S_T0}, s{S_T1}'); P(f's_add_u32 s{sXo}, s{sXo}, s{sS2}'); P(f's_mul_i32 s{sXo}, s{sXo}, 1280')
    P(f's_xor_b32 s{S_T3}, s{sS2}, 2'); P(f's_add_u32 s{S_T3}, s{S_T3}, s{sE}')
    P(f's_add_u32 s{sXoB}, s{S_T1}, s{S_T3}'); P(f's_mul_i32 s{sXoB}, s{sXoB}, 1280'); P(f's_lshl_b32 s{S_T0}, s{S_T0}, 7'); P(f's_add_u32 s{sXoB}, s{sXoB}, s{S_T0}')
    P(f's_lshl_b32 s{sXl}, s{S_WAVE}, 12'); P(f's_add_u32 s{sWl}, s{sXl}, {WRING}')
    P(f's_mul_i32 s{sWo}, s{S_WAVE}, {16*3072}'); P(f's_lshl_b32 s{S_T0}, s{sJ}, 7'); P(f's_add_u32 s{sWo}, s{sWo}, s{S_T0}')
    vxd = V(4); vwd = V(4); t0 = V(1, 2); t1 = V(); t2 = V()
    P(f'v_lshrrev_b32 v{t0}, 3, v0'); P(f'v_and_b32 v{t1}, 7, v0'); P(f'v_lshrrev_b32 v{t2}, 4, v0')
    P(f'v_xor_b32 v{t2}, v{t2}, v{t1}'); P(f'v_lshlrev_b32 v{t2}, 4, v{t2}')
    P(f'v_mul_u32_u24 v{vxd}, 40960, v{t0}'); P(f'v_add_u32 v{vxd}, v{vxd}, v{t2}')
    P(f'v_xor_b32 v{vxd+1}, 64, v{vxd}'); P(f'v_add_u32 v{vxd+1}, {8*40960-1024}, v{vxd+1}')
    P(f'v_add_u32 v{vxd+2}, {16*40960-2048}, v{vxd}'); P(f'v_add_u32 v{vxd+3}, {16*40960-2048}, v{vxd+1}')
    P(f'v_and_b32 v{t2}, 2, v{t0}'); P(f'v_xor_b32 v{t2}, v{t2}, v{t1}'); P(f'v_lshlrev_b32 v{t2}, 4, v{t2}')
    P(f'v_mul_u32_u24 v{vwd}, 3072, v{t0}'); P(f'v_add_u32 v{vwd}, v{vwd}, v{t2}')
    P(f'v_add_u32 v{vwd+1}, {8*3072-1024}, v{vwd}')
    P(f'v_xor_b32 v{vwd+2}, 64, v{vwd}'); P(f'v_xor_b32 v{vwd+3}, 64, v{vwd+1}')
    vdd = V(2); vvd = V(4); vfh = V(); vfv = V(); vfl = V()
    P(f'v_and_b32 v{t2}, 2, v{t0}'); P(f'v_lshlrev_b32 v{t2}, 1, v{t2}'); P(f'v_xor_b32 v{t2}, v{t2}, v{t1}'); P(f'v_lshlrev_b32 v{t2}, 4, v{t2}')
    P(f'v_mul_u32_u24 v{vdd}, 1280, v{t0}'); P(f'v_add_u32 v{vdd}, v{vdd}, v{t2}'); P(f'v_add_u32 v{vdd+1}, {8*1280-1024}, v{vdd}')
    P(f'v_mul_u32_u24 v{vvd}, 640, v{t0}'); P(f'v_add_u32 v{vvd}, v{vvd}, v{t2}')
    for i in range(1, 4): P(f'v_add_u32 v{vvd+i}, {i*(8*640-1024)}, v{vvd}')
    if opt('dpf', 1):
        P(f's_lshl_b32 s{S_T0}, s2, 2'); P(f's_add_u32 s{S_T0}, s{S_T0}, s{S_WAVE}')
        P(f's_sub_u32 s{S_T1}, s{S_T0}, 384'); P(f's_cmp_ge_u32 s{S_T0}, 384'); P(f's_cselect_b32 s{S_T1}, s{S_T1}, s{S_T0}'); P(f's_mul_i32 s{S_T1}, s{S_T1}, 5120')
        P(f'v_min_u32 v{vfh}, 39, v0'); P(f'v_lshl_add_u32 v{vfh}, v{vfh}, 7, s{S_T1}')
        P(f's_mul_i32 s{S_T1}, s{S_T0}, 3840'); P(f's_add_u32 s{S_T1}, s{S_T1}, 1024')
        P(f'v_min_u32 v{t2}, 5, v0'); P(f'v_lshrrev_b32 v{vfv}, 1, v{t2}'); P(f'v_mul_u32_u24 v{vfv}, 1024, v{vfv}'); P(f'v_lshl_add_u32 v{vfv}, v{t2}, 7, v{vfv}'); P(f'v_add_u32 v{vfv}, s{S_T1}, v{vfv}')
    args(P)
    srd(P, R_A, P_WG, WGB); srd(P, R_B, P_WU, WGB, back=2048)
    def dma_x(g):
        ops = [f's_add_u32 m0, s{sXl}, {XRING + (g % NX)*16384}']
        for i in range(4): ops.append((f'buffer_load_dwordx4 v{vxd+i}, {rs(R_X)}, s{sXo} offen offset:{1024*i} lds', f'x{g}'))
        if g == 9: ops.append(f's_mov_b32 s{sXo}, s{sXoB}')
        elif g == 14: ops += [f's_mul_i32 s{sXo}, s{sE}, -2560', f's_add_u32 s{sXo}, s{sXo}, s{sXoB}', f's_add_u32 s{sXo}, s{sXo}, 1280']
        else: ops.append(f's_add_u32 s{sXo}, s{sXo}, {128 if g < 9 else 256}')
        return ops
    def dma_w(g):
        ops = [f's_add_u32 m0, s{sWl}, {(g % NW)*16384}']
        for i in range(4):
            ops.append((f'buffer_load_dwordx4 v{vwd+i}, {rs(R_A if i < 2 else R_B)}, s{sWo} offen offset:{1024*i} lds', f'w{g}'))
        ops.append(f's_add_u32 s{sWo}, s{sWo}, {64*3072}')
        return ops
    def dpf():
        if not opt('dpf', 1): return
        P(f's_cmp_ge_u32 s2, 96'); P(f's_cselect_b64 s[{R_C}:{R_C+1}], s[{P_WU}:{P_WU+1}], s[{P_WG}:{P_WG+1}]'); P(f's_mov_b32 s{R_C+2}, {WGB}'); P(f's_mov_b32 s{R_C+3}, 0x20000')
        P(f'buffer_load_dword v126, v{vfh}, {rs(R_C)}, 0 offen'); P(f'buffer_load_dword v126, v{vfv}, {rs(R_X)}, 0 offen')
    startq = dma_x(0) + dma_w(0) + dma_x(1) + dma_w(1)
    def pop_start(k):
        while startq and k > 0:
            op = startq.pop(0); emit(op)
            if isinstance(op, tuple): k -= 1
    pop_start(opt('p0', 0)); dpf(); pop_start(opt('p1', 2))
    st(P, 'start')
    srd(P, R_C, P_WD, WDB); srd(P, R_D, P_OUT, XB)
    P(f's_lshl_b32 s{S_T0}, s{sJ}, 2'); P(f's_add_u32 s{sJ}, s{S_T0}, s{S_WAVE}')
    def offs(s2reg):
        return [f's_mul_i32 s{sHo}, s{s2reg}, 192', f's_add_u32 s{sHo}, s{sHo}, s{sJ}', f's_lshl_b32 s{sHo}, s{sHo}, 10', f's_add_u32 s{sHo}, s{sHo}, {WS_H}']
    def offf(s2reg):
        return [f's_mul_i32 s{sFo}, s{s2reg}, 96', f's_add_u32 s{sFo}, s{sFo}, s{sJ}', f's_lshl_b32 s{sFo}, s{sFo}, 7', f's_add_u32 s{sFo}, s{sFo}, {WS_FH}']
    def offst(s2reg): return [f's_lshl_b32 s{sSt}, s{s2reg}, 10', f's_add_u32 s{sSt}, s{sSt}, {WS_STAT}']
    for op in offs(sS2) + offf(sS2) + offst(sS2): P(op)
    P(f's_xor_b32 s{sB}, s{sS2}, 2'); P(f's_add_u32 s{sB}, s{sB}, s{sE}'); P(f's_xor_b32 s{sA}, s{sB}, 1')
    P(f's_lshl_b32 s{S_T0}, s{S_XCD}, 1'); P(f's_and_b32 s{sJ0}, s{S_R}, 1'); P(f's_add_u32 s{sRp}, s{S_T0}, s{sJ0}')
    P(f's_lshr_b32 s{sC}, s{S_R}, 1'); P(f's_sub_u32 s{S_T0}, s{sC}, 10'); P(f's_cmp_ge_u32 s{sC}, 10'); P(f's_cselect_b32 s{sC}, s{S_T0}, s{sC}')
    P(f's_sub_u32 s{S_T0}, s{sC}, 5'); P(f's_cmp_ge_u32 s{sC}, 5'); P(f's_cselect_b32 s{S_T1}, s{S_T0}, s{sC}'); P(f's_cselect_b32 s{S_T2}, 0x80008000, 0')
    P(f's_cmp_ge_u32 s{S_T1}, 3'); P(f's_cselect_b32 s{sSg0}, 0x80008000, 0'); P(f's_xor_b32 s{sSg0}, s{sSg0}, s{S_T2}')
    P(f's_cmp_ge_u32 s{S_T1}, 2'); P(f's_cselect_b32 s{sSg1}, 0x80008000, 0'); P(f's_xor_b32 s{sSg1}, s{sSg1}, s{S_T2}')
    P(f's_lshl_b32 s{S_T3}, s{sRp}, 2'); P(f's_add_u32 s{S_T3}, s{S_T3}, s{S_WAVE}')
    P(f's_mul_i32 s{S_T0}, s{S_T3}, 40960'); P(f's_lshl_b32 s{S_T1}, s{S_T1}, 7'); P(f's_add_u32 s{S_T0}, s{S_T0}, s{S_T1}'); P(f's_add_u32 s{sVo}, s{S_T0}, {WS_V}')
    P(f's_mul_i32 s{S_T0}, s{S_T3}, {96*1024}'); P(f's_add_u32 s{S_T0}, s{S_T0}, {WS_H}')
    P(f's_mul_i32 s{S_T2}, s{sJ0}, {24*1024}'); P(f's_add_u32 s{sHb}, s{S_T0}, s{S_T2}')
    P(f's_xor_b32 s{S_T1}, s{sJ0}, 1'); P(f's_and_b32 s{S_T2}, s{S_WAVE}, 2'); P(f's_add_u32 s{S_T1}, s{S_T1}, s{S_T2}'); P(f's_xor_b32 s{S_T2}, s{S_T1}, 2')
    P(f's_mul_i32 s{sH2}, s{S_T1}, {24*1024}'); P(f's_add_u32 s{sH2}, s{sH2}, s{S_T0}'); P(f's_mul_i32 s{sH3}, s{S_T2}, {24*1024}'); P(f's_add_u32 s{sH3}, s{sH3}, s{S_T0}')
    P(f's_lshr_b32 s{S_T0}, s{S_T3}, 1'); P(f's_mul_i32 s{S_T0}, s{S_T0}, {96*128}'); P(f's_add_u32 s{S_T0}, s{S_T0}, {WS_FH}')
    P(f's_mul_i32 s{sFh2}, s{S_T1}, {24*128}'); P(f's_add_u32 s{sFh2}, s{sFh2}, s{S_T0}'); P(f's_mul_i32 s{sFh3}, s{S_T2}, {24*128}'); P(f's_add_u32 s{sFh3}, s{sFh3}, s{S_T0}')
    P(f's_mul_i32 s{S_T0}, s{sRp}, 192'); P(f's_mul_i32 s{S_T2}, s{sJ0}, 24'); P(f's_add_u32 s{S_T0}, s{S_T0}, s{S_T2}'); P(f's_lshl_b32 s{S_T0}, s{S_T0}, 7'); P(f's_add_u32 s{sFh}, s{S_T0}, {WS_FH}')
    P(f's_mul_i32 s{S_T0}, s{S_WAVE}, {16*1280}'); P(f's_lshl_b32 s{S_T2}, s{sC}, 7'); P(f's_add_u32 s{S_T0}, s{S_T0}, s{S_T2}')
    P(f's_mul_i32 s{S_T2}, s{sJ0}, {384*1280}'); P(f's_add_u32 s{sDo}, s{S_T0}, s{S_T2}')
    P(f's_sub_u32 s{sD2}, s{S_T0}, s{S_T2}'); P(f's_add_u32 s{sD2}, s{sD2}, {384*1280}')
    P(f's_lshl_b32 s{sDl}, s{S_WAVE}, 11')
    P(f's_lshr_b32 s{S_T0}, s{S_WAVE}, 1'); P(f's_and_b32 s{S_T1}, s{S_WAVE}, 1'); P(f's_lshl_b32 s{S_T2}, s{S_T1}, 10'); P(f's_add_u32 s{S_T0}, s{S_T0}, s{S_T2}')
    P(f's_lshl_b32 s{S_T2}, s{sRp}, 1'); P(f's_add_u32 s{S_T0}, s{S_T0}, s{S_T2}'); P(f's_mul_i32 s{S_T0}, s{S_T0}, 1280')
    P(f's_lshl_b32 s{S_T2}, s{sC}, 7'); P(f's_add_u32 s{sXo2}, s{S_T0}, s{S_T2}')
    P(f's_lshl_b32 s{S_T1}, s{S_T1}, 2'); P(f's_lshr_b32 s{S_T0}, s{sRp}, 3'); P(f's_add_u32 s{S_T0}, s{S_T0}, s{S_T1}'); P(f's_lshl_b32 s{S_T0}, s{S_T0}, 7'); P(f's_add_u32 s{sFv}, s{S_T0}, {WS_FV}')
    P(f'v_min_u32 v{t2}, 47, v0'); P(f'v_add_u32 v{vfh}, 24, v{t2}'); P(f'v_cmp_gt_u32 vcc, 24, v{t2}'); P(f'v_cndmask_b32 v{vfh}, v{vfh}, v{t2}, vcc'); P(f'v_lshlrev_b32 v{vfh}, 7, v{vfh}')
    P(f'v_lshrrev_b32 v{vfv}, 1, v0'); P(f'v_lshlrev_b32 v{vfv}, 10, v{vfv}'); P(f'v_and_b32 v{t2}, 1, v0'); P(f'v_lshl_add_u32 v{vfv}, v{t2}, 8, v{vfv}')
    vxr = V(4); vwr = V(); vlin = V(); vst = V()
    P(f'v_and_b32 v{t0}, 31, v0'); P(f'v_lshrrev_b32 v{t1}, 5, v0'); P(f'v_bfe_u32 v{t2}, v0, 1, 3')
    P(f'v_xor_b32 v{t1}, v{t1}, v{t2}'); P(f'v_lshlrev_b32 v{t1}, 4, v{t1}'); P(f'v_lshl_add_u32 v{vxr}, v{t0}, 7, v{t1}')
    for ks in range(1, 4): P(f'v_xor_b32 v{vxr+ks}, {32*ks}, v{vxr}')
    P(f'v_lshlrev_b32 v{vst}, 4, v{t0}'); P(f'v_lshlrev_b32 v{vlin}, 4, v0')
    P(f'v_bfe_u32 v{t0}, v0, 3, 2'); P(f'v_xor_b32 v{t0}, s{S_WAVE}, v{t0}'); P(f'v_lshlrev_b32 v{vwr}, 5, v{t0}')
    P(f'v_and_b32 v{t0}, 3, v0'); P(f'v_lshl_add_u32 v{vwr}, v{t0}, 3, v{vwr}')
    P(f'v_bfe_u32 v{t0}, v0, 2, 2'); P(f'v_lshl_add_u32 v{vwr}, v{t0}, 7, v{vwr}')
    P(f'v_bfe_u32 v{t0}, v0, 4, 1'); P(f'v_lshl_add_u32 v{vwr}, v{t0}, 11, v{vwr}')
    P(f'v_lshrrev_b32 v{t0}, 5, v0'); P(f'v_lshl_add_u32 v{vwr}, v{t0}, 10, v{vwr}')
    P(f'v_add_u32 v{vwr}, {WRING}, v{vwr}')
    vtr = V(2); vx2 = V(); m1 = V(16)
    P(f'v_and_b32 v{t0}, 1, v0'); P(f'v_lshlrev_b32 v{vtr}, 5, v{t0}')
    P(f'v_bfe_u32 v{t0}, v0, 1, 1'); P(f'v_lshl_add_u32 v{vtr}, v{t0}, 3, v{vtr}')
    P(f'v_bfe_u32 v{t0}, v0, 4, 1'); P(f'v_lshl_add_u32 v{vtr}, v{t0}, 4, v{vtr}')
    P(f'v_bfe_u32 v{t0}, v0, 3, 1'); P(f'v_lshl_add_u32 v{vtr}, v{t0}, 6, v{vtr}')
    P(f'v_bfe_u32 v{t0}, v0, 2, 2'); P(f'v_lshl_add_u32 v{vtr}, v{t0}, 7, v{vtr}')
    P(f'v_lshrrev_b32 v{t0}, 5, v0'); P(f'v_lshl_add_u32 v{vtr}, v{t0}, 9, v{vtr}'); P(f'v_xor_b32 v{vtr+1}, 64, v{vtr}')
    P(f'v_and_b32 v{t0}, 31, v0'); P(f'v_lshrrev_b32 v{t1}, 5, v0'); P(f'v_lshlrev_b32 v{t1}, 1, v{t1}'); P(f'v_bfe_u32 v{t2}, v0, 1, 3')
    P(f'v_xor_b32 v{t2}, v{t1}, v{t2}'); P(f'v_lshlrev_b32 v{t2}, 4, v{t2}'); P(f'v_lshl_add_u32 v{vx2}, v{t0}, 7, v{t2}')
    P(f's_add_u32 s{S_T0}, s{sXl}, {XS}'); P(f'v_add_u32 v{vx2}, s{S_T0}, v{vx2}')
    mk = V.mark()
    sel = V(4); cs = V(4); ka = V(4); kb = V(4); xf = V(16); stat = V(16); tmp = V(8); hp = V(8)
    vs1, vh = hp, hp+1
    P(f's_and_b32 s{S_T1}, s{S_WAVE}, 1'); P(f's_lshl_b32 s{S_T1}, s{S_T1}, 5')
    P(f'v_add_u32 v{t0}, s{S_T1}, v{t0}'); P(f'v_cvt_f32_u32 v{vs1}, v{t0}'); P(f'v_mul_f32 v{vs1}, {fl(1/64)}, v{vs1}'); P(f'v_cvt_f32_u32 v{vh}, v{t1}')
    P(f'v_mov_b32 v{tmp+5}, {fl(32.0)}'); P('v_cmp_gt_u32 vcc, 32, v0')
    for op in gen_m1(P, m1, vs1, tmp, None, vh): P(op)
    P(f'v_lshrrev_b32 v{t0}, 2, v0'); P(f'v_lshrrev_b32 v{t1}, 4, v0'); P(f'v_xor_b32 v{t0}, v{t0}, v{t1}'); P(f'v_and_b32 v{t0}, 1, v{t0}')
    P(f'v_add_u32 v{t0}, -1, v{t0}'); P(f'v_and_b32 v{sel}, 0x3f803f80, v{t0}')
    for i in range(1, 4): P(f'v_mov_b32 v{sel+i}, v{sel}'); P(f'v_mov_b32 v{ka+i}, 0'); P(f'v_mov_b32 v{kb+i}, 0')
    nonce(P)
    st(P, 'setup')
    hop(P, 'ffn')
    pop_start(opt('p2', 10))
    P('s_branch ffn_main'); P.raw('.p2align 12'); P('ffn_main:')
    def step(n, i):
        if n < 40: return i, n, i, n % 4
        m = n - 40; sub, m = divmod(m, 20); gb, u = divmod(m, 4)
        return 4 + 2*sub + (i & 1), 8*gb + 2*u + (i >> 1), (i & 1) + 2*(u >> 1), 2*(u & 1) + (i >> 1)
    def rd_x(n, i):
        _, _, blk, ks = step(n, i)
        return (f'ds_read_b128 {q4(xf+4*i)}, v{vxr+ks} offset:{XRING + ((n//4) % NX)*16384 + blk*4096}', f'rx{i}')
    def rd_w(n, q):
        g, ks = divmod(n, 4)
        return (f'ds_read_b64_tr_b16 {q2(4*n+2*q, "a")}, v{vwr} offset:{(g % NW)*16384 + ks*4096 + q*512}', 'rw')
    sreg = [stat, stat+4, stat+8, stat+12, sel, sel+4, stat, stat+4]
    def ld_stat(ts): return [f'buffer_load_dwordx4 {q4(sreg[t])}, v{vst}, {rs(R_WS)}, s{sSt} offen offset:{512*i} sc1' for i, t in enumerate(ts)]
    def chk_stat(ts): return lambda: check(P, ld_stat(ts), [sreg[t]+3 for t in ts], sleep=8)
    def epi(ts, tag):
        def pre(t): return [f'v_mov_b32 v{kb}, v{sreg[t]}', f'{M32} {q16(ACC+16*t)}, {q4(ka)}, {q4(kb)}, {q16(ACC+16*t)}']
        seq = pre(ts[0]) + pre(ts[1])
        for i, t in enumerate(ts):
            o = hp + 4*(t & 1)
            b = silu_mul_ops(ACC+16*t, sreg[t]+1, sreg[t]+2, tmp, o)
            b.append((f'buffer_store_dwordx4 {q4(o)}, v{vlin}, {rs(R_WS)}, s{sHo} offen' + ('' if opt('xplain', 0) else ' sc1'), tag) if not opt('xnost', 0) else (f's_mov_b32 s{S_SPIN}, 0', tag))
            if i + 1 < len(ts): b.append(f's_add_u32 s{sHo}, s{sHo}, {96*1024}')
            if i + 2 < len(ts): b.insert(8, pre(ts[i+2])[0]); b.insert(12, pre(ts[i+2])[1])
            seq += b
        return seq
    caug = [f'v_cvt_pk_bf16_f32 v{ka}, 0, v{cs}', f'v_cmp_gt_u32 vcc, 32, v0', f'v_sub_f32 v{t0}, v{cs}, v{ka}',
            f'v_cvt_pk_bf16_f32 v{ka}, v{cs}, v{t0}', f'v_cndmask_b32 v{ka}, 0, v{ka}, vcc']
    def flag_h(tag, nxt):
        P.wait_tag(tag); set_flag(P, t0, sFo)
        if nxt:
            for op in offf(nxt): P(op)
    def dma_d(sl):
        ops = [f's_add_u32 m0, s{sDl}, {dslot(sl)}', f's_add_u32 s{sDt}, s{sDo if sl < 12 else sD2}, {64*1280*(sl % 6 + 12*((sl // 6) & 1))}']
        for i in range(0 if opt('xnod', 0) else 2): ops.append((f'buffer_load_dwordx4 v{vdd+i}, {rs(R_C)}, s{sDt} offen offset:{1024*i} lds', f'd{sl}'))
        return ops
    HD = 32
    def hreg(n): return (160 + 4*(n % HD)) % 256
    def ld_h(n):
        sl, ks = divmod(n, 4)
        ops = [(f'buffer_load_dwordx4 {q4(hreg(n), "a")}, v{vlin}, {rs(R_WS)}, s{sHb} offen offset:{1024*ks} sc1', 'h')]
        if ks == 3:
            if sl == 11: ops.append(f's_mov_b32 s{sHb}, s{sH2}')
            elif sl == 17: ops.append(f's_mov_b32 s{sHb}, s{sH3}')
            else: ops.append(f's_add_u32 s{sHb}, s{sHb}, {4096*(7 if sl == 5 else 1)}')
        return ops
    def ld_f(vo, so): return f'buffer_load_dword v{vfl}, v{vo}, {rs(R_WS)}, s{so} offen sc1'
    P.wait_tag('x0', 'w0'); P('s_barrier')
    st(P, 'first')
    for op in [rd_w(0, 0), rd_w(0, 1)] + [rd_x(0, t) for t in range(4)]: emit(op)
    W.m = startq + dma_x(2) + dma_w(2) + dma_x(3) + dma_w(3)
    def queued(tag): return any(isinstance(o, tuple) and o[1] == tag for o in W.m)
    def nvm(): return len([o for o in W.m if op_cost(o) > 4])
    DORD = [6, 7, 8, 9, 4, 5, 10, 11, 0, 1, 2, 3] + list(range(12, 20))
    PACE = dict(zip(range(5, 20), map(int, opt('pace', '011111111122222'))))
    nd = 0; done = {}; flagged = set()
    NHA = opt('nha', 74)
    for n in range(80):
        g, ks = divmod(n, 4); last = (n == 79)
        ex = opt('exa', 0) if n < 40 else opt('exb', 8) if n < 60 else opt('exc', 0)
        def mf(i, must=(), nm=0, extra=0):
            t, kk, _, _ = step(n, i); acc = ACC + 16*t
            W.mfma(f'{M32} {q16(acc)}, {q4(4*kk, "a")}, {q4(xf+4*i)}, {"0" if kk == 0 else q16(acc)}', must=must, nm=nm, extra=extra)
        wn = [rd_w(n+1, 0), rd_w(n+1, 1)] if n + 1 < 40 else []
        if n == opt('nstat', 32): W.m += ld_stat([0, 1, 2, 3])
        if n == 41: W.q += caug + [chk_stat([0, 1, 2, 3])] + offst(sB) + epi([0, 1, 2, 3], 'hA') + offs(sB)
        if n == 48: W.m += ld_stat([4, 5])
        if n == 61: W.q += [chk_stat([4, 5])] + offst(sA) + ld_stat([6, 7]) + epi([4, 5], 'hB') + offs(sA)
        for tag, n0 in (('hA', 41), ('hB', 61)):
            if n > n0 and tag not in done and not any(isinstance(o, tuple) and o[1] == tag for o in W.q): done[tag] = n
        if n == NHA: W.m.append(ld_f(vfh, sFh))
        big = nvm() > 8
        P.wait_tag('rx1', 'rw')
        if ks < 3:
            mf(0, wn[:1] + [rd_x(n+1, 0)], 1 if big else 0, ex + (8 if big else 0))
            mf(1, wn[1:] + [rd_x(n+1, 1)], 0 if wn else 1, ex - 4)
            P.wait_tag('rx3')
            mf(2, [rd_x(n+1, 2)], 1 if wn else 0, ex)
            mf(3, [rd_x(n+1, 3)], 1, ex - (0 if wn else 4))
        else:
            mf(0, [], 1, ex)
            assert not queued(f'x{g+1}') and not queued(f'w{g+1}')
            def sync():
                nonlocal nd
                P.wait(lg=0); P.wait_tag(f'x{g+1}', f'w{g+1}'); P('s_barrier')
                if g + NX < 20: W.m += dma_x(g+NX)
                if g + NW < 10: W.m += dma_w(g+NW)
                for _ in range(PACE.get(g, 0)):
                    sl = DORD[nd]; nd += 1
                    assert g >= (5 if 6 <= sl < 10 else {4: 6, 5: 6, 10: 7, 11: 7, 0: 8, 1: 8, 2: 9, 3: 9}[sl] if sl < 12 else 16 + (sl - 12)//2)
                    W.m += dma_d(sl)
            mf(1, [sync] + ([] if last else wn + [rd_x(n+1, 0)]), 0, ex)
            mf(2, [] if last else [rd_x(n+1, 1), rd_x(n+1, 2)], 0, ex)
            mf(3, [] if last else [rd_x(n+1, 3)], 1, ex - 4)
        for tag, nxt in (('hA', sB), ('hB', sA)):
            if tag in done and tag not in flagged and n >= done[tag] + opt('fdel', 8):
                flag_h(tag, nxt); flagged.add(tag)
        if n < 40: W.mfma(f'v_mfma_f32_16x16x32_bf16 {q4(cs)}, {q4(sel)}, {q4(4*n, "a")}, {"0" if n == 0 else q4(cs)}', nm=0, extra=-4)
        if n % 8 == 7 and n < 79: st(P, f'n{n}')
    print('epilogues done at', done, 'left', len(W.m), len(W.q), flagged)
    assert 'hA' in flagged and nd >= 12 and not W.q
    later = [op for sl in DORD[nd:] for op in dma_d(sl)]
    st(P, 'phB')
    chk_stat([6, 7])()
    LEAD = opt('lead', 24)
    nh = 0; c = 0; checked = False
    for op in epi([6, 7], 'hC'):
        c += emit(op)
        if c >= opt('esp', 56):
            c = 0
            if 'hB' not in flagged: flag_h('hB', sA); flagged.add('hB')
            elif not checked and not any(op_text(o).startswith('buffer_load_dword v') for o in W.m): check(P, [ld_f(vfh, sFh)], [vfl]); checked = True; st(P, 'hA')
            elif W.m:
                while W.m and emit(W.m.pop(0)) < 8: pass
            else:
                for o in ld_h(nh): emit(o)
                nh += 1
    assert checked
    W.drain()
    P(f'v_min_u32 v{vfh}, 23, v0'); P(f'v_lshlrev_b32 v{vfh}, 7, v{vfh}')
    st(P, 'epiB'); P.wait(lg=0)
    P(f's_cmp_ge_u32 s{S_R}, 20'); P(f's_cbranch_scc1 {name}_help')
    vm, lg, hist = list(P.vm), list(P.lg), list(P.hist)
    V.release(mk)
    wf = V(24); m1n = V(32); vtm = V(2); vth = V(2); vt2 = V(2); vt3 = V(2); vtv = V(2); vxs = V(4); vor = V()
    SAC = 160; XF = 192; XP = 224; TQ = 224; tmp2 = m1n
    while nh < opt('lead0', 8):
        for o in ld_h(nh): emit(o)
        nh += 1
    for i in range(2): P(f'v_add_u32 v{vtm+i}, 65536, v{vtr+i}')
    def rd_d(n, dt, q):
        sl, ks = divmod(n, 4); r = wf + 8*(n % 3) + 4*dt + 2*q
        if sl < 12: ad = dslot(sl); b = (vtm, vth)[(ad >> 16) - 1]; ad &= 65535
        else: b = (vt2, vt3)[(sl - 12)//6]; ad = ((sl - 12) % 6)*8192
        return (f'ds_read_b64_tr_b16 {q2(r)}, v{b+dt} offset:{ad + ks*2048 + q*1024}', f'rd{n%3}')
    P.wait_tag(*[f'd{i}' for i in range(12)]); P('s_barrier')
    for n in range(2):
        for dt in range(2):
            for q in range(2): emit(rd_d(n, dt, q))
    W.q = [f'v_add_u32 v{vth+i}, 131072, v{vtr+i}' for i in range(2)] + \
          [f's_lshr_b32 s{S_T3}, s{S_WAVE}, 1', f's_mul_i32 s{S_T2}, s{S_T3}, 49152'] + [f'v_add_u32 v{vt2+i}, s{S_T2}, v{vtr+i}' for i in range(2)] + \
          [f's_sub_u32 s{S_T2}, 49152, s{S_T2}'] + [f'v_add_u32 v{vt3+i}, s{S_T2}, v{vtr+i}' for i in range(2)] + \
          [f's_lshl_b32 s{S_T3}, s{S_T3}, 14', f's_add_u32 s{S_T3}, s{S_T3}, {VB}', f'v_add_u32 v{vtv}, s{S_T3}, v{vtr}', f'v_add_u32 v{vtv+1}, s{S_T3}, v{vtr+1}',
           f's_add_u32 s{S_T3}, s{sXl}, {XS}', f'v_add_u32 v{vor}, s{S_T3}, v{vlin}', f'v_mov_b32 v{vxs}, v{vx2}',
           f'v_xor_b32 v{vxs+1}, 16, v{vx2}', f'v_xor_b32 v{vxs+2}, 64, v{vx2}', f'v_xor_b32 v{vxs+3}, 80, v{vx2}'] + \
          [f'v_xor_b32 v{m1n+16*dt+i}, s{sSg1 if dt else sSg0}, v{m1+i}' for dt in range(2) for i in range(16)]
    vdma = []
    for hf in range(2):
        vdma.append(f's_lshl_b32 s{S_T2}, s{S_WAVE}, 13'); vdma.append(f's_add_u32 m0, s{S_T2}, {VB + 4096*hf}')
        for i in range(4): vdma.append((f'buffer_load_dwordx4 v{vvd+i}, {rs(R_WS)}, s{sVo} offen offset:{1024*i} sc1 lds', 'v'))
        vdma.append(f's_add_u32 s{sVo}, s{sVo}, {32*640}')
    xdma = [f's_add_u32 m0, s{sXl}, {XS}'] + [(f'buffer_load_dwordx4 v{vxd+i}, {rs(R_X)}, s{sXo2} offen offset:{1024*i} lds', 'x') for i in range(4)]
    xrd = [f'ds_read_b128 {q4(XP+4*i)}, v{vxs+i}' for i in range(4)]
    xun = []
    for i in range(16):
        xun.append(f'v_lshlrev_b32 v{XF+2*i}, 16, v{XP+i}'); xun.append(f'v_and_b32 v{XF+2*i+1}, 0xffff0000, v{XP+i}')
    NFC = opt('nfc', 12); NV = opt('nv', 78); NB = opt('nb', 24); NC = opt('nc', 52); PD = opt('pd', 12)
    lim = 48; W.m = later
    for n in range(96):
        def mf(dt, must, nm):
            acc = ACC + 16*dt; r = wf + 8*(n % 3) + 4*dt
            W.mfma(f'{M32} {q16(acc)}, {q4(r)}, {q4(hreg(n), "a")}, {"0" if n == 0 else q16(acc)}', must=must, nm=nm, extra=opt('exg', 4))
        if n == NFC: flag_h('hC', None); st(P, 'flagC')
        for nn, vo, so, nm_ in ((NB, vfh, sFh2, 'hB'), (NC, vfh, sFh3, 'hC'), (NV, vfv, sFv, 'V')):
            if n == nn - PD: P(ld_f(vo, so))
            if n == nn:
                check(P, [ld_f(vo, so)], [vfl]); st(P, nm_)
                if nm_ == 'V': W.m += vdma
                else: lim += 24
        if n == 56: P.wait_tag('x'); W.q += xrd + xun
        P.wait_tag(f'rd{n%3}')
        if n == 23: P('s_barrier'); W.m += dma_d(20) + dma_d(21) + dma_d(22) + dma_d(23) + xdma
        if n == 46: assert not W.m; P.wait_tag(*[f'd{i}' for i in range(12, 24)]); P('s_barrier')
        def hl():
            nonlocal nh
            if nh < min(lim, n + 1 + LEAD):
                nh += 1; return ld_h(nh - 1)
            return []
        assert nh > n
        mf(0, ([rd_d(n+2, 0, 0), rd_d(n+2, 0, 1)] if n < 94 else []) + hl(), 0)
        mf(1, ([rd_d(n+2, 1, 0), rd_d(n+2, 1, 1)] if n < 94 else []) + ([] if W.m else hl()), 1)
    assert not W.m and not W.q
    st(P, 'g2loop')
    P.wait_tag('v'); P('s_barrier')
    seq = [(p, ks) for p in range(2) for ks in range(4)]
    def rd_v(i, dt, q):
        p, ks = seq[i]; r = wf + 8*(i & 1) + 4*dt + 2*q
        return f'ds_read_b64_tr_b16 {q2(r)}, v{vtv+dt} offset:{p*8192 + ks*2048 + q*1024}'
    NRM = 2048.0*320.0
    for i in range(0, 32, 4):
        for j in range(4): W.q.append(f'v_mul_f32 v{TQ+i+j}, {fl(-LOG2E)}, v{ACC+i+j}')
        for j in range(4): W.q.append(f'v_exp_f32 v{TQ+i+j}, v{TQ+i+j}')
        for j in range(4): W.q.append(f'v_fmaak_f32 v{TQ+i+j}, v{t2}, v{TQ+i+j}, {fl(NRM)}')
        for j in range(4): W.q.append(f'v_rcp_f32 v{TQ+i+j}, v{TQ+i+j}')
        for j in range(4): W.q.append(f'v_mul_f32 v{TQ+i+j}, v{TQ+i+j}, v{ACC+i+j}')
    P(f'v_mov_b32 v{t2}, {fl(NRM)}')
    for dt in range(2):
        for q in range(2): P(rd_v(0, dt, q))
    for _ in range(12): emit(W.q.pop(0))
    for i in range(8):
        p, ks = seq[i]
        for dt in range(2):
            acc = SAC + 16*dt; r = wf + 8*(i & 1) + 4*dt; mm = (m1n + 16*dt if p else m1) + 4*ks
            W.mfma(f'{M32} {q16(acc)}, {q4(r)}, {q4(mm)}, {"0" if i == 0 else q16(acc)}', must=[rd_v(i+1, dt, 0), rd_v(i+1, dt, 1)] if i < 7 else [], extra=24)
    W.drain()
    for c4 in range(4):
        for i in range(8*c4, 8*c4+8, 2):
            P(f'v_pk_fma_f32 {q2(XF+i)}, {q2(TQ+i)}, {q2(SAC+i)}, {q2(XF+i)}')
        for i in range(4): P(f'v_cvt_pk_bf16_f32 v{wf+4*c4+i}, v{XF+8*c4+2*i}, v{XF+8*c4+2*i+1}')
        P(f'ds_write_b128 v{vxs+c4}, {q4(wf+4*c4)}')
    P.wait(lg=0)
    for i in range(4): P(f'ds_read_b128 {q4(tmp2+4*i)}, v{vor} offset:{1024*i}')
    for i in range(4): P(f'buffer_store_dwordx4 {q4(tmp2+4*i)}, v{vxd+i}, {rs(R_D)}, s{sXo2} offen offset:{1024*i}')
    st(P, 'stored')
    if st.on: P.wait_all(); st(P, 'end'); st.flush(P, 1)
    P('s_endpgm')
    P(f'{name}_help:'); P.vm, P.lg, P.hist = vm, lg, hist
    if opt('hpf', 1):
        P(f'v_lshrrev_b32 v{t1}, 5, v0'); P(f'v_lshlrev_b32 v{t1}, 12, v{t1}'); P(f'v_lshl_add_u32 v{t1}, v0, 7, v{t1}'); P(f's_lshl_b32 s{S_T1}, s{sC}, 12'); P(f'v_add_u32 v{xf}, s{S_T1}, v{t1}')
        P(f'v_and_b32 v{t1}, 31, v0'); P(f's_add_u32 s{S_T1}, s{S_T1}, 16384'); P(f'v_lshl_add_u32 v{xf+1}, v{t1}, 7, s{S_T1}')
        def quarter(so):
            P(f'buffer_load_dword v{tmp}, v{xf}, {rs(R_WS)}, s{so} offen sc1'); P(f'buffer_load_dword v{tmp}, v{xf+1}, {rs(R_WS)}, s{so} offen sc1')
        P(f's_lshl_b32 s{S_T3}, s{sRp}, 2'); P(f's_add_u32 s{S_T3}, s{S_T3}, s{S_WAVE}'); P(f's_mul_i32 s{S_T3}, s{S_T3}, {96*1024}'); P(f's_add_u32 s{S_T3}, s{S_T3}, {WS_H}')
        P(f's_mul_i32 s{S_T2}, s{sJ0}, {24*1024}'); P(f's_add_u32 s{sHb}, s{S_T2}, s{S_T3}')
        P(f'buffer_load_dword v{tmp}, v{xf+1}, {rs(R_WS)}, s{sHb} offen sc1')
        P(f's_add_u32 s{sHb}, s{sHb}, {48*1024}'); quarter(sHb)
        P(ld_f(vfh, sFh2))
        flag_h('hC', None)
        check(P, [ld_f(vfh, sFh2)], [vfl]); quarter(sH2)
        P(ld_f(vfh, sFh3)); check(P, [ld_f(vfh, sFh3)], [vfl]); quarter(sH3)
    else: flag_h('hC', None)
    P(f's_lshl_b32 s{S_T0}, s2, 2'); P(f's_add_u32 s{S_T0}, s{S_T0}, s{S_WAVE}'); P(f's_cmp_eq_u32 s{S_T0}, 640'); P(f's_cbranch_scc1 {name}_bump'); P('s_endpgm')
    P(f'{name}_bump:')
    P(f'v_lshrrev_b32 v{t0}, 3, v0'); P(f'v_mul_u32_u24 v{t0}, {384*128}, v{t0}'); P(f'v_and_b32 v{t1}, 7, v0'); P(f'v_lshl_add_u32 v{t0}, v{t1}, 9, v{t0}')
    P(f'v_lshlrev_b32 v{t1}, 9, v0')
    for i in range(3): P(f's_mov_b32 s{sB+i}, {WS_FH + 4096*i}')
    P(f's_mov_b32 s{sXo}, {WS_FT}')
    lds_ = [f'buffer_load_dword v{xf+4+i}, v{t0}, {rs(R_WS)}, s{sB+i} offen sc1' for i in range(3)] + [f'buffer_load_dword v{xf+7}, v{t1}, {rs(R_WS)}, s{sXo} offen sc1']
    for l in lds_: P(l)
    check(P, lds_, [xf+4+i for i in range(4)], sleep=16)
    P(f's_mov_b32 s{sXo}, {WS_GEN}'); set_flag(P, t0, sXo)
    P('s_endpgm')
```

```python
import re

REG_RE = re.compile(r'^(-?)(?:abs\(|\|)?([vas])(?:(\d+)|\[(\d+):(\d+)\])\)?\|?$')
def regs_of(op):
    op = op.strip()
    m = REG_RE.match(op)
    if m:
        k = m.group(2)
        if m.group(3) is not None:
            return [(k, int(m.group(3)))]
        return [(k, i) for i in range(int(m.group(4)), int(m.group(5)) + 1)]
    if op in ('vcc', 'exec', 'm0'): return [(op, 0)]
    if op in ('vcc_lo', 'vcc_hi'): return [('vcc', 0)]
    if op in ('exec_lo', 'exec_hi'): return [('exec', 0)]
    return []

TRANS = ('v_exp_f32', 'v_log_f32', 'v_rcp_f32', 'v_rsq_f32', 'v_sqrt_f32', 'v_sin_f32', 'v_cos_f32')
RMW = ('v_fmac_f32', 'v_dot2c_f32_bf16', 'v_pk_fmac', 'v_writelane_b32')

class Ins:
    __slots__ = ('text', 'mn', 'kind', 'w', 'r', 'passes', 'srcc', 'srcab', 'tag', 'wide', 'dpp', 'sdwa')

def parse(text):
    I = Ins(); I.text = text; I.tag = None; I.passes = 0; I.srcc = []; I.srcab = []; I.wide = False; I.dpp = False; I.sdwa = False
    t = text.split(';')[0].strip()
    parts = t.split(None, 1); mn = parts[0]; I.mn = mn
    rest = parts[1] if len(parts) > 1 else ''
    ops = []; depth = 0; cur = ''
    for ch in rest:
        if ch in '[(': depth += 1
        if ch in '])': depth -= 1
        if ch == ',' and depth == 0: ops.append(cur.strip()); cur = ''
        else: cur += ch
    if cur.strip(): ops.append(cur.strip())
    mods = ''
    if ops:
        last = ops[-1].split(None, 1)
        ops[-1] = last[0]; mods = last[1] if len(last) > 1 else ''
    R = [regs_of(o) for o in ops]
    flat = lambda L: [x for l in L for x in l]
    w, r = [], []
    base = re.sub(r'_(e32|e64|dpp|sdwa)$', '', mn)
    if mn.startswith('v_mfma'):
        I.kind = 'mfma'
        w = R[0]; I.srcab = R[1] + R[2]; I.srcc = R[3]; r = I.srcab + I.srcc
        I.passes = 8 if '32x32x16' in mn or '32x32x8' in mn else 4 if '16x16x32' in mn or '16x16x16' in mn else None
        assert I.passes, mn
    elif mn.startswith('v_cmp'):
        I.kind = 'valu'; w = R[0]; r = flat(R[1:])
        if mn.startswith('v_cmpx'): w = w + [('exec', 0)]
    elif base in ('v_readfirstlane_b32', 'v_readlane_b32'):
        I.kind = 'valu'; w = R[0]; r = flat(R[1:])
    elif base in ('v_permlane32_swap_b32', 'v_permlane16_swap_b32', 'v_swap_b32'):
        I.kind = 'valu'; w = R[0] + R[1]; r = R[0] + R[1]
    elif base in ('v_add_co_u32', 'v_sub_co_u32', 'v_addc_co_u32', 'v_subb_co_u32'):
        I.kind = 'valu'; w = R[0] + R[1]; r = flat(R[2:])
    elif mn.startswith('v_'):
        I.kind = 'trans' if base in TRANS else 'dot' if base.startswith('v_dot') else 'valu'
        w = R[0]; r = flat(R[1:])
        if base in RMW: r = r + R[0]
        if any(k in mods for k in ('quad_perm', 'row_', 'wave_')): I.dpp = True; r = r + R[0]
        if 'dst_sel' in mods: I.sdwa = True; r = r + R[0]
    elif mn.startswith('ds_read') or mn.startswith('ds_bpermute') or mn.startswith('ds_swizzle'):
        I.kind = 'dsr'; w = R[0]; r = flat(R[1:])
        if 'd16' in mn: r = r + R[0]
    elif mn.startswith('ds_write') or mn.startswith('ds_add'):
        I.kind = 'dsw'; r = flat(R)
    elif mn.startswith('buffer_load'):
        if re.search(r'\blds\b', mods):
            I.kind = 'dma'; r = flat(R) + [('m0', 0)]
        else:
            I.kind = 'vld'; w = R[0]; r = flat(R[1:])
            if 'd16' in mn: r = r + R[0]
    elif mn.startswith('global_load'):
        I.kind = 'vld'; w = R[0]; r = flat(R[1:])
    elif mn.startswith('buffer_store') or mn.startswith('global_store'):
        I.kind = 'vst'; r = flat(R); I.wide = mn.endswith('x4') or mn.endswith('x3')
        I.srcc = R[0] if mn.startswith('buffer') else R[1]
    elif mn.startswith('buffer_atomic') or mn.startswith('global_atomic'):
        I.kind = 'vst'; r = flat(R)
        assert 'sc0' not in mods
    elif mn.startswith('s_load') or mn.startswith('s_memtime') or mn.startswith('s_memrealtime'):
        I.kind = 'smem'; w = R[0]; r = flat(R[1:])
    elif mn in ('s_waitcnt', 's_barrier', 's_nop', 's_endpgm', 's_sleep', 's_setprio'):
        I.kind = mn
    elif mn.startswith('s_cbranch') or mn == 's_branch':
        I.kind = 'branch'
        if 'vcc' in mn: r = [('vcc', 0)]
        if 'exec' in mn: r = [('exec', 0)]
    elif mn.startswith('s_cmp') or mn.startswith('s_bitcmp'):
        I.kind = 'salu'; r = flat(R)
    elif mn.startswith('s_'):
        I.kind = 'salu'; w = R[0]; r = flat(R[1:])
        if 'saveexec' in mn: w = w + [('exec', 0)]; r = r + [('exec', 0)]
        if mn in ('s_addk_i32', 's_mulk_i32', 's_cmov_b32', 's_cmov_b64', 's_cmovk_i32'): r = r + R[0]
    else:
        raise ValueError('unparsed: ' + text)
    if base == 'v_cndmask_b32' and len(ops) == 3: r = r + [('vcc', 0)]
    I.w = w; I.r = r
    return I

VALUK = ('valu', 'trans', 'dot')
class Prog:
    def __init__(self):
        self.out = []
        self.hist = []
        self.vm = []
        self.lg = []
        self.nlab = 0
        self.count = {}
        self.nops = 0
        self.lazy = []
    def raw(self, text):
        self.out.append(text)
    def comment(self, c):
        self.out.append('    ; ' + c)
    def _push(self, I, states=1):
        self.out.append('    ' + I.text)
        self.hist.append((I, states))
        if len(self.hist) > 40: self.hist.pop(0)
        self.count[I.kind] = self.count.get(I.kind, 0) + 1
    def wait(self, vm=None, lg=None):
        parts = []
        if vm is not None and vm < len(self.vm):
            n = min(vm, 63); parts.append(f'vmcnt({n})'); self.vm = self.vm[len(self.vm) - n:] if n else []
        if lg is not None and lg < len(self.lg):
            n = min(lg, 15)
            if any(o.kind == 'smem' for o in self.lg): n = 0
            parts.append(f'lgkmcnt({n})'); self.lg = self.lg[len(self.lg) - n:] if n else []
        if parts:
            self._push(parse('s_waitcnt ' + ' '.join(parts)))
            if self.lazy and not any(o.kind == 'smem' for o in self.lg):
                for t in self.lazy: self._push(parse(t))
                self.lazy = []
    def wait_tag(self, *tags):
        vm = lg = None
        for i, o in enumerate(self.vm):
            if o.tag in tags: vm = len(self.vm) - 1 - i
        for i, o in enumerate(self.lg):
            if o.tag in tags: lg = len(self.lg) - 1 - i
        self.wait(vm, lg)
    def wait_all(self):
        self.wait(0, 0)
    def _need_states(self, I):
        need = 0; dist = 0
        rs = set(I.r); ws = set(I.w); ab = set(I.srcab); cc = set(I.srcc) if I.kind == 'mfma' else set()
        isvalu = I.kind in VALUK
        ismem = I.kind in ('dsr', 'dsw', 'dma', 'vld', 'vst')
        for P, st in reversed(self.hist):
            pw = set(P.w); req = 0
            pvalu = P.kind in VALUK
            if P.kind == 'mfma':
                n = P.passes
                if I.kind == 'mfma':
                    if ab & pw: req = max(req, {4: 8, 8: 12}[n])
                    if cc & pw:
                        if not (I.srcc == P.w and I.passes == P.passes): req = max(req, {4: 6, 8: 10}[n])
                    elif ws & pw: req = max(req, {4: 8, 8: 12}[n])
                elif isvalu or ismem:
                    if (rs | ws) & pw: req = max(req, {4: 8, 8: 12}[n])
                    if ws & set(P.srcc): req = max(req, {4: 3, 8: 7}[n])
            if pvalu:
                vw = {x for x in pw if x[0] in 'va'}
                sw = {x for x in pw if x[0] in ('s', 'vcc')}
                if I.kind == 'mfma' and rs & vw: req = max(req, 2)
                if P.kind == 'trans' and (isvalu or ismem) and rs & vw: req = max(req, 1)
                if P.kind == 'dot' and (rs | ws) & vw and (isvalu or ismem or I.kind == 'mfma'):
                    chain = I.mn == P.mn and I.w == P.w and len(rs & vw) == 1 and I.r.count(P.w[0]) == 1
                    if not chain: req = max(req, 3)
                if P.sdwa and isvalu and (rs | ws) & vw: req = max(req, 1)
                if I.dpp and rs & vw: req = max(req, 2)
                if I.mn.startswith('v_permlane') and rs & vw: req = max(req, 2)
                if I.mn.startswith('v_read') and rs & vw: req = max(req, 1)
                if sw & rs:
                    if ismem: req = max(req, 5)
                    elif I.mn.startswith('v_readlane') or I.mn.startswith('v_writelane'): req = max(req, 4)
                    elif isvalu: req = max(req, 2)
                    else: req = max(req, 1)
                if ('exec', 0) in pw:
                    if I.dpp: req = max(req, 5)
                    elif I.kind == 'mfma' or I.mn.startswith('v_read') or I.mn.startswith('v_permlane') or I.mn.startswith('v_write'): req = max(req, 4)
            if P.kind == 'vst' and P.wide and ws & set(P.srcc): req = max(req, 2)
            if P.kind == 'salu' and ('m0', 0) in pw and I.kind == 'dma': req = max(req, 1)
            if P.kind == 'salu' and ('exec', 0) in pw and I.dpp: req = max(req, 1)
            need = max(need, req - dist)
            dist += st
            if dist >= 20: break
        return need
    def __call__(self, text, tag=None):
        for line in text.split('\n'):
            line = line.strip()
            if not line: continue
            if line.startswith(';'): self.out.append('    ' + line); continue
            if line.endswith(':'): self.out.append(line); continue
            I = parse(line); I.tag = tag
            if I.kind == 's_nop':
                self._push(I, int(line.split()[1]) + 1); continue
            assert I.kind != 's_waitcnt', 'use wait()'
            touched = set(I.r) | set(I.w)
            vm = lg = None
            for i, o in enumerate(self.vm):
                if touched & set(o.w):
                    if I.kind == 'vld' and not ((set(I.r) - set(I.w)) & set(o.w)): continue
                    vm = len(self.vm) - 1 - i
            for i, o in enumerate(self.lg):
                if touched & set(o.w): lg = len(self.lg) - 1 - i
            self.wait(vm, lg)
            n = self._need_states(I)
            while n > 0:
                k = min(n, 16); self._push(parse(f's_nop {k-1}'), k); n -= k; self.nops += k
            self._push(I)
            if I.kind in ('vld', 'vst', 'dma'): self.vm.append(I)
            if I.kind in ('dsr', 'dsw', 'smem'): self.lg.append(I)
    def label(self, base='L'):
        self.nlab += 1
        return f'{base}_{self.nlab}'
    def settle(self):
        self('s_nop 15')
    def text(self):
        return '\n'.join(self.out) + '\n'

def v(i, n=1): return f'v{i}' if n == 1 else f'v[{i}:{i+n-1}]'
def a(i, n=1): return f'a{i}' if n == 1 else f'a[{i}:{i+n-1}]'
def s(i, n=1): return f's{i}' if n == 1 else f's[{i}:{i+n-1}]'

class Alloc:
    def __init__(self, start, end): self.p = start; self.end = end; self.hi = start
    def __call__(self, n=1, align=None):
        al = align or (1 if n == 1 else 2)
        self.p = (self.p + al - 1) // al * al
        r = self.p; self.p += n; self.hi = max(self.hi, self.p)
        assert self.p <= self.end, f'out of registers {self.p} > {self.end}'
        return r
    def mark(self): return self.p
    def release(self, m): self.p = m
```

```python
from common import *
XT = 0; ZB = 40960; STG = 81920; SST = 123904; A2B = 124928; ROWP = 656
sG, sP, sSig, sTb, sO1, sO2, sK0, sFs = range(S_FREE, S_FREE+8)
sW = S_FREE + 8
sMask, sXl, sG0 = S_FREE+16, S_FREE+17, S_FREE+18
sOT, sOX, sOV, sFT, sOS = range(S_FREE+20, S_FREE+25)
MF = 'v_mfma_f32_16x16x32_bf16'
F1A = 0; F2A = 120; A2A = 0
WR = 128
MM = 224

def role_spec(P, st, name):
    V = Alloc(1, 124)
    t0, t1, t2, t3 = V(1, 2), V(), V(), V()
    g, n, lin, g4f = V(), V(), V(), V()
    bgq = []
    def bg(k=1):
        for _ in range(k):
            while bgq:
                op = bgq.pop(0)
                if isinstance(op, tuple): P(op[0], tag=op[1]); break
                P(op)
                if op.startswith('buffer'): break
    P(f's_sub_u32 s{S_T0}, s{S_R}, 24'); P(f's_and_b32 s{sP}, s{S_T0}, 1'); P(f's_lshr_b32 s{S_T0}, s{S_T0}, 1')
    P(f's_lshl_b32 s{sG}, s{S_XCD}, 2'); P(f's_add_u32 s{sG}, s{sG}, s{S_T0}')
    vx = V()
    P(f'v_lshrrev_b32 v{t0}, 3, v0'); P(f'v_and_b32 v{t1}, 7, v0'); P(f'v_and_b32 v{t2}, 6, v{t0}'); P(f'v_xor_b32 v{t2}, v{t2}, v{t1}')
    P(f'v_mul_u32_u24 v{vx}, 40960, v{t0}'); P(f'v_lshl_add_u32 v{vx}, v{t2}, 4, v{vx}')
    P(f's_lshl_b32 s{S_T0}, s{S_WAVE}, 1'); P(f's_add_u32 s{S_T0}, s{S_T0}, s{sP}'); P(f's_xor_b32 s{S_T1}, s{S_T0}, 1')
    P(f's_mul_i32 s{sXl}, s{S_T0}, 10240'); P(f's_mul_i32 s{sMask}, s{S_T1}, 10240')
    P(f's_lshl_b32 s{S_T0}, s{S_T0}, 8'); P(f's_add_u32 s{S_T0}, s{S_T0}, s{sG}'); P(f's_mul_i32 s{sO1}, s{S_T0}, 1280')
    P(f's_lshl_b32 s{S_T1}, s{S_T1}, 8'); P(f's_add_u32 s{S_T1}, s{S_T1}, s{sG}'); P(f's_mul_i32 s{sO2}, s{S_T1}, 1280')
    P(f'v_lshrrev_b32 v{g}, 4, v0'); P(f'v_and_b32 v{n}, 15, v0'); P(f'v_lshlrev_b32 v{lin}, 4, v0')
    vrd = V(2)
    P(f'v_add_u32 v{vrd}, s{sXl}, v{lin}'); P(f'v_add_u32 v{vrd+1}, s{sMask}, v{lin}')
    P(f'v_cvt_f32_u32 v{g4f}, v{g}'); P(f'v_mul_f32 v{g4f}, 4.0, v{g4f}')
    P(f's_mul_i32 s{sSig}, s{sP}, 0x80008000')
    P(f's_mul_i32 s{sTb}, s{S_WAVE}, 5'); P(f's_lshr_b32 s{sTb}, s{sTb}, 1'); P(f's_sub_u32 s{sK0}, 2, s{sP}')
    P(f's_cmp_eq_u32 s{sG}, 0'); P(f's_cselect_b32 s{sFs}, 32, 64'); P(f's_cselect_b32 s{sG0}, 0xffff, 0'); P(f's_mov_b32 s{sG0+1}, 0')
    for i in range(0, 96, 2): P(f'v_mov_b64 {q2(WR+i)}, 0')
    args(P)
    for hf in range(2):
        for cb in range(10):
            bgq.append(f's_add_u32 m0, s{sMask if hf else sXl}, {XT + cb*896}')
            bgq.append((f'buffer_load_dwordx4 v{vx}, {rs(R_X)}, s{sO2 if hf else sO1} offen offset:{cb*128} lds', f'x{hf}_{cb}'))
    bg(opt('sx0', 8))
    st(P, 'start')
    srd(P, R_A, P_WR, WFB); srd(P, R_B, P_WI, WFB); srd(P, R_C, P_WD, WDB)
    def gen_m():
        M = MM
        P(f'v_lshrrev_b32 v{t0}, 1, v{g}'); P(f'v_and_b32 v{t1}, 1, v{g}'); P(f'v_lshlrev_b32 v{t0}, 2, v{t0}'); P(f'v_add_lshl_u32 v{t0}, v{t0}, v{t1}, 2')
        P(f'v_cvt_f32_u32 v{t3}, v{t0}')
        P(f's_and_b32 s{S_T0}, s{S_WAVE}, 1'); P(f's_lshl_b32 s{S_T0}, s{S_T0}, 5')
        for nt in range(2):
            P(f'v_add_u32 v{t0}, s{S_T0}, v{n}')
            if nt: P(f'v_add_u32 v{t0}, 16, v{t0}')
            else: P(f'v_cmp_eq_u32 vcc, 1, v{t0}'); P(f'v_cndmask_b32 v{t0}, v{t0}, 64, vcc')
            P(f'v_and_b32 v{t1}, 1, v{t0}'); P(f'v_lshrrev_b32 v{t0}, 1, v{t0}')
            P(f'v_cvt_f32_u32 v{t1}, v{t1}'); P(f'v_cvt_f32_u32 v{t0}, v{t0}')
            P(f'v_mul_f32 v{t0}, {fl(1/64)}, v{t0}'); P(f'v_mul_f32 v{t1}, {fl(-0.25)}, v{t1}')
            P(f'v_fmac_f32 v{t1}, v{t0}, v{t3}')
            for ks in range(2):
                for j in range(8): P(f'v_fmamk_f32 v{M+16*nt+8*ks+j}, v{t0}, {fl(float(32*ks + 8*(j>>2) + (j&3)))}, v{t1}')
            for i in range(16): P(f'v_cos_f32 v{M+16*nt+i}, v{M+16*nt+i}')
    def gen_f(which, B, tks, rate):
        base = F1A if which == 1 else F2A
        dl, ph, tw = B, B+1, B+2; X = B + 4; PK = B + 28
        if which == 2:
            P(f'v_cmp_eq_u32 vcc, 3, v{g}'); P(f's_lshl_b32 s{S_T0}, s{sP}, 23'); P(f's_add_u32 s{S_T0}, s{S_T0}, 0x3f000000')
            P(f'v_mov_b32 v{t3}, s{S_T0}'); P(f'v_cndmask_b32 v{t3}, 1.0, v{t3}, vcc')
        for tk in tks:
            P(f's_add_u32 s{S_T0}, s{sTb}, {tk}'); P(f's_lshl_b32 s{S_T0}, s{S_T0}, 4'); P(f'v_add_u32 v{t0}, s{S_T0}, v{n}')
            if which == 1:
                P(f'v_lshl_add_u32 v{t0}, v{t0}, 1, s{sK0}'); P(f'v_cvt_f32_u32 v{t0}, v{t0}'); P(f'v_mul_f32 v{dl}, {fl(1/640)}, v{t0}')
                P(f'v_add_f32 v{t1}, 0.5, v{g4f}'); P(f'v_mul_f32 v{ph}, v{dl}, v{t1}')
            else:
                P(f'v_cvt_f32_u32 v{t0}, v{t0}'); P(f'v_add_f32 v{t0}, 0.5, v{t0}'); P(f'v_mul_f32 v{dl}, {fl(1/320)}, v{t0}')
                P(f'v_cvt_f32_u32 v{t1}, s{sK0}'); P(f'v_fma_f32 v{t1}, v{t1}, 0.5, v{g4f}'); P(f'v_mul_f32 v{ph}, v{dl}, v{t1}')
            P(f'v_mul_f32 v{t2}, {fl(16.0)}, v{dl}'); P(f'v_cos_f32 v{t2}, v{t2}')
            for u in range(10):
                x = X + 8*(u % 3)
                if u < 2:
                    for i in range(4): P(f'v_fmamk_f32 v{x+4+i}, v{dl}, {fl(float(16*u+i))}, v{ph}')
                    for i in range(4): P(f'v_cos_f32 v{x+i}, v{x+4+i}')
                    for i in range(4): P(f'v_sin_f32_e64 v{x+4+i}, -v{x+4+i}')
                    if u == 0: P(f'v_add_f32 v{tw}, v{t2}, v{t2}'); P(f'v_add_f32 v{tw+1}, v{t2}, v{t2}')
                else:
                    x1 = X + 8*((u-1) % 3); x2 = X + 8*((u-2) % 3)
                    for i in range(0, 8, 2): P(f'v_pk_fma_f32 {q2(x+i)}, {q2(tw)}, {q2(x1+i)}, {q2(x2+i)} neg_lo:[0,0,1] neg_hi:[0,0,1]')
                if which == 2 and u == 9:
                    P(f'v_mul_f32 v{x+3}, v{x+3}, v{t3}'); P(f'v_mul_f32 v{x+7}, v{x+7}, v{t3}')
                pk = PK + 4*(u & 1)
                for i in range(4): P(f'v_cvt_pk_bf16_f32 v{pk+i}, v{x+2*i}, v{x+2*i+1}')
                for i in range(4):
                    P(f'v_accvgpr_write_b32 a{base + (((i>>1)*3+tk)*5 + (u>>1))*4 + 2*(u&1) + (i&1)}, v{pk+i}')
                if rate and u % rate == 0: bg()
    def gen_a2(B):
        X = B; PK = B + 8; F = B + 12; O = B + 13; MK = B + 14; AD = B + 15; sM = sOT
        P(f's_lshl_b32 s{S_T0}, s{S_WAVE}, 11'); P(f's_add_u32 s{S_T0}, s{S_T0}, {A2B}'); P(f'v_add_u32 v{AD}, s{S_T0}, v{lin}')
        P(f's_lshr_b32 s{S_T2}, s{S_WAVE}, 1'); P(f's_and_b32 s{S_T1}, s{S_WAVE}, 1'); P(f's_lshl_b32 s{S_T1}, s{S_T1}, 4')
        P(f'v_add_u32 v{t0}, s{S_T1}, v{n}')
        P(f'v_cvt_f32_u32 v{t3}, s{S_T2}'); P(f'v_mul_f32 v{t3}, {fl(0.25)}, v{t3}')
        P(f's_cmp_eq_u32 s{sG}, 0'); P(f's_cselect_b32 s{S_T3}, 0, {fl(0.25)}')
        def frag(idx, andmask):
            for j in range(8): P(f'v_fmamk_f32 v{X+j}, v{F}, {fl(float(16*(j>>2)+(j&3)))}, v{O}')
            if idx == 9: P(f'v_cndmask_b32 v{X}, v{X}, v{t1}, s[{sG0}:{sG0+1}]')
            for j in range(8): P(f'v_cos_f32 v{X+j}, v{X+j}')
            for j in range(4): P(f'v_cvt_pk_bf16_f32 v{PK+j}, v{X+2*j}, v{X+2*j+1}')
            for j in range(4): P(f'v_and_b32 v{PK+j}, {andmask}, v{PK+j}')
            P(f'ds_write_b128 v{AD}, {q4(PK)} offset:{(idx & 1)*1024 + (idx >> 3)*8192}')
        P(f'v_mul_u32_u24 v{t1}, s{sFs}, v{t0}'); P(f'v_add_u32 v{t1}, s{sG}, v{t1}')
        P(f'v_cmp_eq_u32 vcc, 0, v{t1}'); P(f's_lshl_b32 s{S_T0}, s{S_T2}, 10'); P(f'v_mov_b32 v{t2}, s{S_T0}')
        P(f'v_cndmask_b32 v{t1}, v{t1}, v{t2}, vcc'); P(f'v_cndmask_b32 v{t2}, v{t3}, 0, vcc')
        P(f'v_cvt_f32_u32 v{t1}, v{t1}'); P(f'v_mul_f32 v{F}, {fl(1/2048)}, v{t1}')
        P(f'v_fma_f32 v{O}, v{F}, v{g4f}, -v{t2}')
        P(f's_cmp_eq_u32 s{sG}, 0'); P(f's_cselect_b32 s{S_T0}, 0, -1')
        P(f'v_and_b32 v{MK}, 1, v{t0}'); P(f'v_add_u32 v{MK}, -1, v{MK}')
        P(f'v_not_b32 v{t1}, v{MK}'); P(f'v_or_b32 v{MK}, s{S_T0}, v{MK}')
        frag(0, f'v{MK}')
        P(f'v_or_b32 v{MK}, s{S_T0}, v{t1}'); P(f'v_add_f32 v{O}, s{S_T3}, v{O}')
        frag(1, f'v{MK}')
        P(f'v_cvt_f32_u32 v{t0}, v{t0}'); P(f'v_mul_f32 v{t1}, 0.5, v{t0}'); P(f'v_mul_f32 v{t0}, {fl(1/2048)}, v{t0}')
        P(f'v_cvt_f32_u32 v{F}, s{sFs}'); P(f'v_mul_f32 v{F}, v{F}, v{t0}')
        P(f'v_cvt_f32_u32 v{O}, s{sG}'); P(f'v_mul_f32 v{O}, v{O}, v{t0}'); P(f'v_fmac_f32 v{O}, v{F}, v{g4f}')
        P(f'v_mul_f32 v{t3}, 4.0, v{t3}'); P(f'v_fmac_f32 v{O}, s{S_T3}, v{t3}')
        P(f's_lshl_b32 s{S_T1}, s{S_T2}, 4'); P(f's_lshl_b32 s{sM}, 0xffff, s{S_T1}'); P(f's_or_b32 s{sM}, s{sM}, s{S_T0}')
        frag(8, f's{sM}')
        P(f'v_add_f32 v{O}, {fl(-0.25)}, v{O}')
        frag(9, f's{sM}')
    GB = 84
    gen_m(); nonce(P); gen_a2(GB)
    strd, vp, vn, vn0 = V(), V(), V(), V()
    P(f'v_lshrrev_b32 v{t0}, 3, v0'); P(f'v_and_b32 v{t1}, 7, v0'); P(f'v_mul_u32_u24 v{strd}, {ROWP}, v{t0}'); P(f'v_lshl_add_u32 v{strd}, v{t1}, 4, v{strd}')
    P(f's_mul_i32 s{S_T0}, s{S_WAVE}, {16*ROWP}'); P(f's_add_u32 s{S_T0}, s{S_T0}, {STG}'); P(f'v_add_u32 v{strd}, s{S_T0}, v{strd}')
    P(f's_mul_i32 s{S_T0}, s{sFs}, 642')
    for i, x in enumerate([0, 1, 2, 3, 16, 17, 18, 19]): P(f's_mul_i32 s{sW+i}, s{S_T0}, {x}')
    P(f's_lshl_b32 s{S_T1}, s{sTb}, 5'); P(f's_add_u32 s{S_T1}, s{S_T1}, s{sK0}'); P(f's_lshl_b32 s{S_T1}, s{S_T1}, 1')
    P(f'v_lshl_add_u32 v{t0}, v{n}, 2, s{S_T1}')
    P(f's_lshl_b32 s{S_T0}, s{S_T0}, 2'); P(f'v_mul_u32_u24 v{t1}, s{S_T0}, v{g}')
    P(f's_mul_i32 s{S_T1}, s{sG}, 642'); P(f'v_add3_u32 v{vp}, v{t0}, v{t1}, s{S_T1}')
    P(f's_sub_u32 s{S_T1}, {2048*642}, s{S_T1}'); P(f's_sub_u32 s{S_T1}, s{S_T1}, s{sW+7}')
    P(f'v_sub_u32 v{vn}, v{t0}, v{t1}'); P(f'v_add_u32 v{vn}, s{S_T1}, v{vn}')
    P(f'v_subrev_u32 v{t0}, {1024*642}, v{vn}'); P(f'v_cndmask_b32 v{vn0}, v{vn}, v{t0}, s[{sG0}:{sG0+1}]')
    wl = []
    for tk in range(3):
        for x in range(8):
            for c in range(4):
                vo = vp if c < 2 else (vn0 if x == 0 else vn); so = sW + (x if c < 2 else 7 - x)
                wl.append(f'buffer_load_short_d16_hi v{WR + tk*32 + c*8 + x}, v{vo}, {rs(R_A if c % 2 == 0 else R_B)}, s{so} offen offset:{tk*64}')
    P(f's_mul_i32 s{sOT}, s{S_WAVE}, {8*81920}'); P(f's_mul_i32 s{S_T0}, s{sP}, 40960'); P(f's_mul_i32 s{S_T1}, s{sG}, 640')
    P(f's_add_u32 s{sOT}, s{sOT}, s{S_T0}'); P(f's_add_u32 s{sOT}, s{sOT}, s{S_T1}'); P(f's_add_u32 s{sOT}, s{sOT}, {WS_T}')
    P(f's_and_b32 s{S_T2}, s{S_WAVE}, 1'); P(f's_mul_i32 s{sOV}, s{S_T2}, {16*81920}'); P(f's_add_u32 s{sOV}, s{sOV}, s{S_T0}')
    P(f's_lshr_b32 s{S_T0}, s{S_WAVE}, 1'); P(f's_lshl_b32 s{S_T1}, s{sG}, 1'); P(f's_add_u32 s{S_T0}, s{S_T0}, s{S_T1}'); P(f's_mul_i32 s{S_T0}, s{S_T0}, 640')
    P(f's_add_u32 s{sOV}, s{sOV}, s{S_T0}'); P(f's_add_u32 s{sOV}, s{sOV}, {WS_V}')
    P(f's_add_u32 s{S_T1}, s{S_T1}, s{sP}'); P(f's_lshl_b32 s{S_T1}, s{S_T1}, 2'); P(f's_add_u32 s{S_T1}, s{S_T1}, s{S_WAVE}')
    P(f's_mul_i32 s{sOX}, s{S_T1}, 10240'); P(f's_add_u32 s{sOX}, s{sOX}, {WS_T}')
    P(f's_lshl_b32 s{S_T1}, s{S_T1}, 7'); P(f's_add_u32 s{sOS}, s{S_T1}, {WS_FT}')
    P(f's_lshl_b32 s{S_T0}, s{S_T2}, 7'); P(f's_lshl_b32 s{S_T1}, s{sP}, 2'); P(f's_add_u32 s{S_T0}, s{S_T0}, s{S_T1}')
    P(f's_lshr_b32 s{S_T1}, s{sG}, 3'); P(f's_add_u32 s{S_T0}, s{S_T0}, s{S_T1}'); P(f's_lshl_b32 s{S_T0}, s{S_T0}, 7'); P(f's_add_u32 s{sFT}, s{S_T0}, {WS_FT}')
    mk = V.mark()
    va = V(10); stw = V(); stw2 = V(); ones = V(); vT = V(); vs = V(3); vr = V(2); sacc = V(4, 2); rec = V(4)
    P(f'v_bfe_u32 v{t0}, v0, 2, 3'); P(f'v_lshlrev_b32 v{t0}, 7, v{t0}'); P(f'v_lshrrev_b32 v{t1}, 5, v0'); P(f'v_mul_u32_u24 v{t1}, 20480, v{t1}'); P(f'v_add_u32 v{t0}, v{t0}, v{t1}')
    P(f'v_and_b32 v{t1}, 3, v0'); P(f'v_lshl_add_u32 v{t0}, v{t1}, 3, v{t0}'); P(f'v_bfe_u32 v{t1}, v0, 3, 2'); P(f'v_lshl_add_u32 v{t0}, v{t1}, 5, v{t0}')
    P(f's_lshr_b32 s{S_T0}, s{S_WAVE}, 1'); P(f's_mul_i32 s{S_T0}, s{S_T0}, 5')
    for tt in range(5):
        for mir in range(2):
            if mir: P(f's_sub_u32 s{S_T1}, {19-tt}, s{S_T0}')
            else: P(f's_add_u32 s{S_T1}, s{S_T0}, {tt}')
            P(f's_and_b32 s{S_T2}, s{S_T1}, 3'); P(f's_lshl_b32 s{S_T2}, s{S_T2}, 5')
            if mir: P(f's_or_b32 s{S_T2}, s{S_T2}, 24')
            P(f's_lshr_b32 s{S_T1}, s{S_T1}, 2'); P(f's_lshl_b32 s{S_T1}, s{S_T1}, 10')
            P(f'v_xor_b32 v{va+2*tt+mir}, s{S_T2}, v{t0}'); P(f'v_add_u32 v{va+2*tt+mir}, s{S_T1}, v{va+2*tt+mir}')
    P(f's_and_b32 s{S_T1}, s{S_WAVE}, 1'); P(f's_mul_i32 s{S_T1}, s{S_T1}, {32*ROWP}'); P(f's_add_u32 s{S_T1}, s{S_T1}, {STG}')
    P(f'v_mul_u32_u24 v{stw}, {ROWP}, v{n}'); P(f'v_lshl_add_u32 v{stw}, v{g}, 4, v{stw}'); P(f'v_add_u32 v{stw}, s{S_T1}, v{stw}')
    P(f's_lshr_b32 s{S_T0}, s{S_WAVE}, 1'); P(f's_mul_i32 s{S_T1}, s{S_T0}, {192-8}'); P(f's_add_u32 s{S_T1}, s{S_T1}, 8'); P(f's_mul_i32 s{S_T0}, s{S_T0}, {128+8}')
    P(f'v_add_u32 v{stw2}, s{S_T1}, v{stw}'); P(f'v_add_u32 v{stw}, s{S_T0}, v{stw}')
    P(f'v_mul_u32_u24 v{t0}, 81920, v{g}'); P(f'v_bfe_u32 v{t1}, v0, 3, 1'); P(f'v_mul_u32_u24 v{t1}, 20480, v{t1}'); P(f'v_and_b32 v{t2}, 7, v0')
    P(f'v_add_u32 v{t0}, v{t0}, v{t1}'); P(f'v_lshl_add_u32 v{vT}, v{t2}, 4, v{t0}')
    P(f'v_bfe_u32 v{t0}, v0, 2, 1'); P(f'v_xor_b32 v{t0}, s{sP}, v{t0}'); P(f'v_lshrrev_b32 v{t1}, 3, v0'); P(f'v_lshl_add_u32 v{t1}, v{t0}, 3, v{t1}')
    P(f's_lshl_b32 s{S_T0}, s{S_WAVE}, 4'); P(f'v_add_u32 v{t1}, s{S_T0}, v{t1}')
    P(f'v_lshlrev_b32 v{vs}, 2, v{t1}'); P(f'v_add_u32 v{vs}, {SST}, v{vs}')
    P(f'v_lshlrev_b32 v{vs+1}, 1, v{t1}'); P(f'v_add_u32 v{vs+1}, {SST+256}, v{vs+1}')
    P(f's_lshl_b32 s{S_T0}, s{sG}, 10'); P(f's_add_u32 s{S_T0}, s{S_T0}, {WS_STAT}'); P(f'v_lshl_add_u32 v{vs+2}, v{t1}, 4, s{S_T0}')
    P(f'v_lshrrev_b32 v{t0}, 1, v{g}'); P(f'v_and_b32 v{t1}, 1, v{g}'); P(f'v_lshlrev_b32 v{t0}, 2, v{t0}'); P(f'v_add_lshl_u32 v{t0}, v{t0}, v{t1}, 3')
    P(f'v_lshlrev_b32 v{t1}, 1, v{t0}'); P(f'v_add_u32 v{vr}, {SST}, v{t1}'); P(f'v_add_u32 v{vr+1}, {SST+256}, v{t0}')
    P(f'v_mov_b32 v{ones}, 0x3f803f80'); P(f'v_mov_b64 {q2(sacc)}, 0'); P(f'v_mov_b64 {q2(sacc+2)}, 0'); P(f'v_mov_b32 v{rec+3}, s{S_NONCE}')
    if opt('wpf', 1):
        pf = V(2)
        P(f's_sub_u32 s{S_T0}, s2, 192'); P(f's_lshl_b32 s{S_T0}, s{S_T0}, 2'); P(f's_add_u32 s{S_T0}, s{S_T0}, s{S_WAVE}')
        P(f's_mul_i32 s{S_T1}, s{S_T0}, {41*128}'); P(f'v_min_u32 v{t0}, 40, v0'); P(f'v_lshl_add_u32 v{pf}, v{t0}, 7, s{S_T1}')
        P(f's_mul_i32 s{S_T1}, s{S_T0}, {60*128}'); P(f'v_min_u32 v{t0}, 59, v0'); P(f'v_lshl_add_u32 v{pf+1}, v{t0}, 7, s{S_T1}')
        pfl = [f'buffer_load_dword v124, v{pf}, {rs(R_A)}, 0 offen', f'buffer_load_dword v124, v{pf}, {rs(R_B)}, 0 offen', f'buffer_load_dword v124, v{pf+1}, {rs(R_C)}, 0 offen']
    else: pfl = []
    assert V.p <= 52, V.p
    st(P, 'genA')
    NF = opt('nf', 3)
    tiles = [(1, 0), (1, 1), (1, 2), (2, 0), (2, 1), (2, 2)]
    for i, (wh, tk) in enumerate(tiles[:NF]): gen_f(wh, GB, [tk], 0 if i < opt('nq', 2) else 1)
    bg(20)
    for op in pfl[2:]: P(op)
    hop(P, 'spec'); P('spec_main:')
    st(P, 'genB')
    MP = 52; MS = 68; MU = 84; XF = 92; AC = 108; RR = AC; NM = XF + 8; M = MM
    blk = [(hf, cb) for hf in range(2) for cb in range(10)]
    def rd(i):
        hf, cb = blk[i]; P.wait_tag(f'x{hf}_{cb}'); P(f'ds_read_b128 {q4(XF+4*(i%4))}, v{vrd+hf} offset:{XT + cb*1024}')
    rd(0); rd(1)
    for i in range(20):
        if i + 2 < 20: rd(i+2)
        hf = blk[i][0]
        for j in range(4):
            r = XF + 4*(i % 4) + j
            P(f'v_dot2c_f32_bf16 v{sacc+2*hf}, v{r}, v{ones}'); P(f'v_dot2c_f32_bf16 v{sacc+2*hf+1}, v{r}, v{r}')
    st(P, 's1_x')
    P(f'v_and_b32 v{t0}, 4, v0'); P(f'v_cmp_eq_u32 vcc, 0, v{t0}')
    for i in range(4): P(f'v_add_f32_dpp v{sacc+i}, v{sacc+i}, v{sacc+i} row_half_mirror row_mask:0xf bank_mask:0xf')
    P(f'v_cndmask_b32 v{t1}, v{sacc+2}, v{sacc}, vcc'); P(f'v_cndmask_b32 v{t2}, v{sacc+3}, v{sacc+1}, vcc')
    for mod in ('quad_perm:[1,0,3,2]', 'quad_perm:[2,3,0,1]'):
        for r in (t1, t2): P(f'v_add_f32_dpp v{r}, v{r}, v{r} {mod} row_mask:0xf bank_mask:0xf')
    P(f'v_mul_f32 v{t1}, {fl(1/640)}, v{t1}'); P(f'v_mul_f32 v{t2}, {fl(1/640)}, v{t2}')
    P(f'v_fma_f32 v{t2}, -v{t1}, v{t1}, v{t2}'); P(f'v_cvt_pk_bf16_f32 v{rec}, -v{t1}, -v{t1}'); P(f'v_max_f32 v{t2}, 0, v{t2}')
    P(f'ds_write_b16 v{vs+1}, v{rec}')
    P(f'v_cvt_pk_bf16_f32 v{t2}, 0, v{t2}'); P(f'v_add_f32 v{t2}, {fl(1e-5)}, v{t2}')
    P(f'v_cvt_pk_bf16_f32 v{t2}, 0, v{t2}'); P(f'v_sqrt_f32 v{t2}, v{t2}')
    P(f'v_cvt_pk_bf16_f32 v{t2}, 0, v{t2}')
    P(f'v_rcp_f32 v{t3}, v{t2}'); P(f'v_mul_f32 v{rec+2}, v{t2}, v{t2}'); P(f'ds_write_b32 v{vs}, v{t3}'); P(f'v_mul_f32 v{rec+1}, {fl(-LOG2E)}, v{t3}')
    P(f's_mov_b32 exec_lo, 0x01010101'); P(f's_mov_b32 exec_hi, 0x01010101')
    P(f'buffer_store_dwordx4 {q4(rec)}, v{vs+2}, {rs(R_WS)}, 0 offen sc1', tag='stat')
    P(f's_mov_b64 exec, -1')
    P.wait(lg=0); P('s_barrier')
    for ks in range(2):
        for q in range(2): P(f'ds_read_b128 {q4(RR+8*ks+4*q)}, v{vr} offset:{(32*ks+8*q)*4}')
    for ks in range(2):
        for q in range(2): P(f'ds_read_b64 {q2(NM+4*ks+2*q)}, v{vr+1} offset:{(32*ks+8*q)*2}')
    seg = [(0, 0, 0, 0), (0, 5120, 0, 1), (1, 5120, 1, 0), (1, 0, 1, 1)]
    fr = [(tt, sg, ks) for tt in range(5) for sg in range(4) for ks in range(2)]
    def rdx(i, q):
        tt, sg, ks = fr[i]; mir, off, _, _ = seg[sg]
        return (f'ds_read_b64_tr_b16 {q2(XF+4*(i%4)+2*q)}, v{va+2*tt+mir} offset:{XT + off + (4*ks+q)*10240}', f'f{i}')
    W = Weave(P)
    for i in range(2): W.emit(rdx(i, 0)); W.emit(rdx(i, 1))
    for op in pfl[:2]: P(op)
    for i in range(0, 16, 2):
        for nt in range(2): P(f'v_pk_mul_f32 {q2(M+16*nt+i)}, {q2(M+16*nt+i)}, {q2(RR+i)}')
    for i in range(16): P(f'v_cvt_pk_bf16_f32 v{MP+i}, v{M+2*i}, v{M+2*i+1}')
    W.q = [f'v_xor_b32 v{MS+8*nt+4*ks+i}, s{sSig}, v{MP+8*nt+4*ks+i}' for ks in range(2) for nt in range(2) for i in range(4)]
    for i, (mm, ks) in enumerate([(MP, 0), (MP, 1), (MS, 0), (MS, 1)]):
        for nt in range(2): W.mfma(f'{MF} {q4(MU+4*nt)}, {q4(NM+4*ks)}, {q4(mm+8*nt+4*ks)}, {q4(MU+4*nt) if i else 0}', extra=8)
    assert not W.q
    W.emit(rdx(2, 0)); W.emit(rdx(2, 1))
    st(P, 's1_mprep')
    AC2 = M; TM = M + 16
    def epi(tt):
        ac = AC if tt % 2 == 0 else AC2; ops = []
        for nt in range(2):
            a1 = ac + 4*nt; a2 = ac + 8 + 4*nt; tm = TM + 8*nt
            for r in range(4): ops.append(f'v_add_f32 v{tm+r}, v{a1+r}, v{a2+3-r}')
            for r in range(4): ops.append(f'v_sub_f32 v{tm+4+r}, v{a1+r}, v{a2+3-r}')
            for r in range(4): ops.append(f'v_cvt_pk_bf16_f32 v{tm+r}, v{tm+2*r}, v{tm+2*r+1}')
            for ty in range(2): ops.append(f'ds_write_b64 v{stw2 if tt & 1 else stw}, {q2(tm+2*ty)} offset:{nt*16*ROWP + ty*320 + (tt>>1)*64}')
        return ops
    for i, (tt, sg, ks) in enumerate(fr):
        mir, off, acc, sig = seg[sg]; ac = (AC if tt % 2 == 0 else AC2) + 8*acc
        first = (sg in (0, 2) and ks == 0)
        if i % 8 == 0: W.drain()
        if i % 8 == 1 and tt: W.q += epi(tt-1)
        if i % 2 == 0: P.wait_tag(f'f{i+1}')
        for nt in range(2):
            W.mfma(f'{MF} {q4(ac+4*nt)}, {q4(XF+4*(i%4))}, {q4((MS if sig else MP)+8*nt+4*ks)}, {q4(MU+4*nt) if first else q4(ac+4*nt)}',
                   must=[rdx(i+3, nt)] if i + 3 < len(fr) else [], extra=opt('s1x', 6))
    W.drain()
    for op in epi(4): P(op)
    P.wait(lg=0); P('s_barrier')
    st(P, 's1_dft')
    def stage_out(voff, soff, step8, tmp, tag):
        for hf in range(2):
            for c in range(5): P(f'ds_read_b128 {q4(tmp+4*(5*hf+c))}, v{strd} offset:{hf*8*ROWP + c*128}')
        for hf in range(2):
            for c in range(5): P(f'buffer_store_dwordx4 {q4(tmp+4*(5*hf+c))}, v{voff}, {rs(R_WS)}, s{soff} offen offset:{c*128} sc1', tag=tag)
            if hf == 0: P(f's_add_u32 s{soff}, s{soff}, {step8}')
    stage_out(vT, sOT, 4*81920, 44, 'T')
    st(P, 's1_stored')
    V.release(mk)
    vxm = V(2); vz = V(3); vzr = V(); vy = V(2); va2 = V(); vV = vx; vxd = vrd
    Y = V(48); XF = V(16); SBx = V(16); TM = V(16)
    rest = tiles[NF:]
    P(f'v_and_b32 v{t0}, 7, v0'); P(f'v_lshlrev_b32 v{t0}, 7, v{t0}'); P(f'v_bfe_u32 v{t1}, v0, 3, 1'); P(f'v_mul_u32_u24 v{t1}, 5120, v{t1}')
    P(f'v_bfe_u32 v{t2}, v0, 1, 3'); P(f'v_xor_b32 v{t2}, v{t2}, v{g}'); P(f'v_lshlrev_b32 v{t2}, 4, v{t2}'); P(f'v_add3_u32 v{vxm}, v{t0}, v{t1}, v{t2}')
    P(f'v_xor_b32 v{vxm+1}, 64, v{vxm}')
    for tk in range(3):
        P(f's_add_u32 s{S_T0}, s{sTb}, {tk}'); P(f's_and_b32 s{S_T1}, s{S_T0}, 1'); P(f's_lshr_b32 s{S_T0}, s{S_T0}, 1')
        P(f's_lshl_b32 s{S_T0}, s{S_T0}, 10'); P(f's_lshl_b32 s{S_T1}, s{S_T1}, 3'); P(f's_add_u32 s{S_T0}, s{S_T0}, s{S_T1}'); P(f's_add_u32 s{S_T0}, s{S_T0}, {ZB}')
        P(f'v_add_u32 v{vz+tk}, s{S_T0}, v{lin}')
    P(f'v_add_u32 v{vzr}, {ZB}, v{lin}'); P(f'v_add_u32 v{va2}, {A2B}, v{lin}')
    P(f'v_mul_u32_u24 v{t0}, {ROWP}, v{n}'); P(f'v_lshlrev_b32 v{t1}, 3, v{g}'); P(f's_lshl_b32 s{S_T0}, s{sTb}, 5')
    P(f's_add_u32 s{S_T1}, s{S_T0}, {STG}'); P(f'v_add3_u32 v{vy}, v{t0}, v{t1}, s{S_T1}')
    P(f's_sub_u32 s{S_T1}, {STG + 632 - 64}, s{S_T0}'); P(f'v_sub_u32 v{t0}, v{t0}, v{t1}'); P(f'v_add_u32 v{vy+1}, s{S_T1}, v{t0}')
    P(f'v_lshrrev_b32 v{t0}, 3, v0'); P(f'v_and_b32 v{t2}, 7, v0'); P(f'v_mul_u32_u24 v{vV}, 81920, v{t0}'); P(f'v_lshl_add_u32 v{vV}, v{t2}, 4, v{vV}')
    P(f'v_xor_b32 v{t2}, v{t2}, v{g}'); P(f'v_mul_u32_u24 v{t0}, 640, v{t0}'); P(f'v_lshl_add_u32 v{vxd}, v{t2}, 4, v{t0}'); P(f'v_xor_b32 v{vxd+1}, 64, v{vxd}')
    bgq += wl
    if rest: gen_f(rest[0][0], GB, [rest[0][1]], 1); rest = rest[1:]
    else: bg(opt('w0', 10))
    P.wait_tag('T'); set_flag(P, t0, sOS); P(f's_add_u32 s{sOS}, s{sOS}, {WS_FV - WS_FT}')
    st(P, 'flagT')
    for wh, tk in rest: gen_f(wh, GB, [tk], 1)
    bg(opt('w1', 8))
    st(P, 'gen2')
    P(f'v_lshlrev_b32 v{t2}, 10, v{n}')
    ld = f'buffer_load_dword v{t3}, v{t2}, {rs(R_WS)}, s{sFT} offen sc1'
    P(ld); bg(opt('w2', 6)); check(P, [ld], [t3], sleep=2)
    st(P, 'Tseen')
    P(f's_mul_i32 s{S_T1}, s{S_WAVE}, 10240')
    for hf in range(2):
        for c in range(5):
            P(f's_add_u32 m0, s{S_T1}, {XT + (hf*5+c)*1024 - c*128}')
            P(f'buffer_load_dwordx4 v{vxd+hf}, {rs(R_WS)}, s{sOX} offen offset:{c*128} sc1 lds', tag='X')
        if hf == 0: P(f's_add_u32 s{sOX}, s{sOX}, 5120')
    bg(opt('w3', 8))
    P.wait_tag('X'); P('s_barrier')
    st(P, 'mid_x')
    AC = MM
    fr = [(ty, rt, ks) for ty in range(2) for rt in range(4) for ks in range(5)]
    def rdX(i):
        ty, rt, ks = fr[i]; sg = 5*ty + ks
        return (f'ds_read_b128 {q4(XF+4*(i%4))}, v{vxm+(sg&1)} offset:{XT + (10*rt + (sg>>1))*1024}', f'f{i}')
    for i in range(3): W.emit(rdX(i))
    def cvt1(ty, rt):
        ac = AC + 12*(rt & 1)
        return [f'v_cvt_pk_bf16_f32 v{Y + (tk*2+ty)*8 + 2*rt + h}, v{ac+4*tk+2*h}, v{ac+4*tk+2*h+1}' for tk in range(3) for h in range(2)]
    def rdA(k): return f'ds_read_b128 {q4(A2A+4*k, "a")}, v{va2} offset:{k*1024}'
    for i, (ty, rt, ks) in enumerate(fr):
        ac = AC + 12*(rt & 1)
        if ks == 1 and i > 1: assert not W.q; W.q += cvt1(*fr[i-5][:2])
        if i % 2 == 0: P.wait_tag(f'f{i+1}')
        for tk in range(3):
            must = []
            if tk == 0 and i + 3 < len(fr): must = [rdX(i+3)]
            if tk == 1 and bgq: must = [bgq.pop(0)]
            if tk == 2 and 21 <= i < 37: must = [rdA(i-21)]
            W.mfma(f'{MF} {q4(ac+4*tk)}, {q4(XF+4*(i%4))}, {q4(F1A+((ty*3+tk)*5+ks)*4, "a")}, {q4(ac+4*tk) if ks else 0}', must=must)
    assert not W.q
    print('W loads left after (i):', len(bgq)); assert len(bgq) <= 32
    st(P, 'mid_i')
    SA = MM; SB = XF
    T2 = [SB, SA, WR]; T3 = [SB, SA, WR + 32]
    def w(tk, c, x): return WR + tk*32 + c*8 + x
    def ii(tk):
        for ty in range(2):
            if ty == 1 and tk == 0: assert not W.q
            for ks in range(2):
                for mt in range(4):
                    ac = T2[tk] + 16*ty + 4*mt
                    W.mfma(f'{MF} {q4(ac)}, {q4(A2A+(2*mt+ks)*4, "a")}, {q4(Y+(tk*2+ty)*8+4*ks)}, {q4(ac) if ks else 0}', must=[bgq.pop(0)] if (bgq and mt % 2) else [])
    def iii(tk):
        BP = Y + tk*16
        for ty in range(2):
            for cs in range(2):
                for nt in range(4):
                    ac = T3[tk] + 16*ty + 4*nt
                    W.mfma(f'{MF} {q4(ac)}, {q4(BP+ty*8+cs*4)}, {q4(A2A+32+(2*nt+cs)*4, "a")}, {q4(ac) if cs else 0}')
    def filt(tk):
        W.drain(); S = T2[tk]
        for x in range(0, 8, 2):
            cr, ci, sr, si = S + x, S + 16 + x, S + 8 + x, S + 24 + x
            pr, pi_, nr, ni = (q2(w(tk, c, x)) for c in range(4))
            fpr, fpi, fnr, fni, gpr, gpi, gnr, gni = (q2(TM + 2*i) for i in range(8))
            N1 = 'neg_lo:[0,1] neg_hi:[0,1]'; N0 = 'neg_lo:[1,0,0] neg_hi:[1,0,0]'
            P(f'v_pk_add_f32 {fpr}, {q2(cr)}, {q2(si)}'); P(f'v_pk_add_f32 {fpi}, {q2(ci)}, {q2(sr)} {N1}')
            P(f'v_pk_add_f32 {fnr}, {q2(cr)}, {q2(si)} {N1}'); P(f'v_pk_add_f32 {fni}, {q2(ci)}, {q2(sr)}')
            P(f'v_pk_mul_f32 {gpr}, {fpr}, {pr}'); P(f'v_pk_mul_f32 {gpi}, {fpr}, {pi_}')
            P(f'v_pk_mul_f32 {gnr}, {fnr}, {nr}'); P(f'v_pk_mul_f32 {gni}, {fnr}, {ni}')
            if x == 0:
                def special(Q, back):
                    Q(f'v_mul_f32 v{t0}, v{cr}, v{w(tk,0,0)}'); Q(f'v_mul_f32 v{t1}, v{cr}, v{w(tk,1,0)}')
                    Q(f'v_mul_f32 v{t2}, v{sr}, v{w(tk,2,0)}'); Q(f'v_mul_f32 v{t3}, v{sr}, v{w(tk,3,0)}')
                    Q(f'v_fma_f32 v{t0}, -v{ci}, v{w(tk,1,0)}, v{t0}'); Q(f'v_fma_f32 v{t1}, v{ci}, v{w(tk,0,0)}, v{t1}')
                    Q(f'v_fma_f32 v{t2}, -v{si}, v{w(tk,3,0)}, v{t2}'); Q(f'v_fma_f32 v{t3}, v{si}, v{w(tk,2,0)}, v{t3}')
                special(P, None)
            P(f'v_pk_fma_f32 {gpr}, {fpi}, {pi_}, {gpr} {N0}'); P(f'v_pk_fma_f32 {gpi}, {fpi}, {pr}, {gpi}')
            P(f'v_pk_fma_f32 {gnr}, {fni}, {ni}, {gnr} {N0}'); P(f'v_pk_fma_f32 {gni}, {fni}, {nr}, {gni}')
            P(f'v_pk_add_f32 {q2(cr)}, {gpr}, {gnr}'); P(f'v_pk_add_f32 {q2(ci)}, {gpi}, {gni}')
            P(f'v_pk_add_f32 {q2(sr)}, {gni}, {gpi} {N1}'); P(f'v_pk_add_f32 {q2(si)}, {gpr}, {gnr} {N1}')
        fix = [f'v_cndmask_b32 v{r}, v{r}, v{t}, s[{sG0}:{sG0+1}]' for r, t in ((S, t0), (S+16, t1), (S+8, t2), (S+24, t3))]
        return fix + [f'v_cvt_pk_bf16_f32 v{Y + tk*16 + i}, v{S+2*i}, v{S+2*i+1}' for i in range(16)]
    def cvtz(tk):
        ops = []
        for k in range(8):
            ac = T3[tk] + 4*k
            ops += [f'v_cvt_pk_bf16_f32 v{ac}, v{ac}, v{ac+1}', f'v_cvt_pk_bf16_f32 v{ac+1}, v{ac+2}, v{ac+3}', f'ds_write_b64 v{vz+tk}, {q2(ac)} offset:{k*5120}']
        return ops
    W.q = ['s_nop 0', 's_nop 0', 's_nop 0'] + cvt1(1, 3)
    ii(0); ii(1)
    if opt('fine', 0): st(P, 'ii01')
    W.q = filt(0)
    if opt('fine', 0): st(P, 'f0')
    ii(2)
    if opt('fine', 0): st(P, 'ii2')
    assert not bgq
    W.q = filt(1); iii(0)
    if opt('fine', 0): st(P, 'iii0')
    W.q = filt(2) + cvtz(0); iii(1)
    assert len(W.q) <= 24
    if opt('fine', 0): st(P, 'iii1')
    W.q += cvtz(1); iii(2)
    if opt('fine', 0): st(P, 'iii2')
    W.drain()
    for op in cvtz(2): P(op)
    P.wait(lg=0); P('s_barrier')
    st(P, 'mid_iii')
    fr = [(nt, ty, ks) for nt in range(4) for ty in range(2) for ks in range(5)]
    def rdz(i):
        nt, ty, ks = fr[i]
        return (f'ds_read_b128 {q4(XF+4*(i%4))}, v{vzr} offset:{(ty*4+nt)*5120 + ks*1024}', f'f{i}')
    for i in range(3): W.emit(rdz(i))
    A4 = WR
    def epi4(nt):
        ac = A4 + 24*(nt & 1); ops = []
        for td in range(3):
            e = ac + 4*td; o = ac + 12 + 4*td; tm = TM + 8*(td & 1)
            for r in range(4): ops.append(f'v_add_f32 v{tm+r}, v{e+r}, v{o+r}')
            for r in range(4): ops.append(f'v_sub_f32 v{tm+7-r}, v{e+r}, v{o+r}')
            for r in range(4): ops.append(f'v_cvt_pk_bf16_f32 v{tm+r}, v{tm+2*r}, v{tm+2*r+1}')
            ops.append(f'ds_write_b64 v{vy}, {q2(tm)} offset:{nt*16*ROWP + td*32}')
            ops.append(f'ds_write_b64 v{vy+1}, {q2(tm+2)} offset:{nt*16*ROWP + (2-td)*32}')
        return ops
    for i, (nt, ty, ks) in enumerate(fr):
        ac = A4 + 24*(nt & 1) + 12*ty
        if i % 10 == 0: W.drain()
        if i % 10 == 1 and nt: W.q += epi4(nt-1)
        if i % 2 == 0: P.wait_tag(f'f{i+1}')
        for td in range(3):
            W.mfma(f'{MF} {q4(ac+4*td)}, {q4(F2A+((ty*3+td)*5+ks)*4, "a")}, {q4(XF+4*(i%4))}, {q4(ac+4*td) if ks else 0}',
                   must=[rdz(i+3)] if (td == 0 and i + 3 < len(fr)) else [])
    W.drain()
    for op in epi4(3): P(op)
    P.wait(lg=0); P('s_barrier')
    st(P, 'mid_iv')
    stage_out(vV, sOV, 8*81920, Y, 'V')
    st(P, 'mid_stored')
    P.wait_tag('V'); set_flag(P, t0, sOS)
    if st.on: P.wait_all(); st(P, 'end'); st.flush(P, 1)
    P('s_endpgm')
```

```python
from prog import *
import os
OPT = dict(kv.split('=') if '=' in kv else (kv, '1') for kv in os.environ.get('OPT', '').split(',') if kv)
def opt(k, d): return type(d)(OPT.get(k, d))
WS_GEN = 0x0
WS_STAT = 0x10000
FSH = opt('fsh', 2)
WS_FT = 0x20000
WS_FV = 0x30000
WS_FH = 0x40000
WS_F2 = 0x80000
WS_T = 0x100000
WS_V = 0x400000
WS_H = 0x700000
WS_STAMP = 0xD00000
WS_SIZE = 0xE00000
XB = 2048*1280; WGB = 640*3072; WDB = 1536*1280; WFB = 2048*642
S_WAVE = 3
P_X, P_WR, P_WI, P_WG, P_WU, P_WD, P_OUT, P_DBG, P_WS = 4, 6, 8, 12, 14, 16, 18, 20, 22
R_X, R_WS, R_A, R_B, R_C, R_D = 24, 28, 32, 36, 40, 44
S_XCD, S_R = 48, 49
S_T0, S_T1, S_T2, S_T3 = 50, 51, 52, 53
S_NONCE, S_SPIN = 54, 55
S_FREE = 56
S_STAMP = 88
LOG2E = 1.4426950408889634
SPIN_MAX = 1 << 16
import struct
def f2u(x): return struct.unpack('<I', struct.pack('<f', x))[0]
def fl(x): return hex(f2u(x))
def q4(r, k='v'): return f'{k}[{r}:{r+3}]'
def q2(r, k='v'): return f'{k}[{r}:{r+1}]'
def rs(r): return f's[{r}:{r+3}]'

def srd(P, r, ptr, nbytes, back=0):
    if back:
        P(f's_sub_u32 s{r}, s{ptr}, {back}'); P(f's_subb_u32 s{r+1}, s{ptr+1}, 0')
    else:
        P(f's_mov_b32 s{r}, s{ptr}'); P(f's_mov_b32 s{r+1}, s{ptr+1}')
    P(f's_mov_b32 s{r+2}, {nbytes+back}'); P(f's_mov_b32 s{r+3}, 0x20000')

def entry(P, name, nwg=256, code_end=None):
    P(f's_cmp_lt_u32 s2, {nwg}'); P(f's_cbranch_scc1 {name}_go'); P('s_endpgm'); P(f'{name}_go:')
    if opt('entry', 0):
        P('s_memrealtime s[90:91]'); P('s_memtime s[92:93]')
    P('s_load_dwordx16 s[4:19], s[0:1], 0'); P('s_load_dwordx4 s[20:23], s[0:1], 64')
    P(f's_and_b32 s{S_XCD}, s2, 7'); P(f's_lshr_b32 s{S_R}, s2, 3')
    P('v_lshrrev_b32 v1, 6, v0'); P(f'v_readfirstlane_b32 s{S_WAVE}, v1')
    P('v_and_b32 v0, 63, v0')
    if code_end and opt('cpf', 1):
        P('s_getpc_b64 s[60:61]'); P(f'{name}_pc:')
        P(f's_and_b32 s{S_T0}, s{S_R}, 7'); P(f's_lshl_b32 s{S_T0}, s{S_T0}, 2'); P(f's_add_u32 s{S_T0}, s{S_T0}, s{S_WAVE}'); P(f's_lshl_b32 s{S_T0}, s{S_T0}, 11')
        P(f'v_lshl_add_u32 v2, v0, 5, s{S_T0}'); P(f'v_min_u32 v2, {code_end}-{name}_pc-4, v2')
        P('v_mov_b32 v3, s61'); P('v_add_co_u32 v2, vcc, s60, v2'); P('v_addc_co_u32 v3, vcc, 0, v3, vcc')
        P('global_load_dword v125, v[2:3], off')

def args(P, fused=True):
    P.wait(lg=0)
    if fused: P(f's_load_dword s{S_NONCE}, s[{P_WS}:{P_WS+1}], {WS_GEN}')
    srd(P, R_X, P_X, XB); srd(P, R_WS, P_WS, WS_SIZE)
def prologue(P, name, nwg=256):
    entry(P, name, nwg); args(P, False)

def nonce(P):
    P.wait(lg=0)
    P(f's_mul_i32 s{S_NONCE}, s{S_NONCE}, 0x9E3779B1'); P(f's_add_u32 s{S_NONCE}, s{S_NONCE}, 0x7F4A7C15')

def set_flag(P, vz, soff):
    P(f'v_mov_b32 v{vz}, s{S_NONCE}')
    P('s_mov_b64 exec, 1')
    P(f'buffer_store_dword v{vz}, off, {rs(R_WS)}, s{soff} sc1', tag='flag')
    P('s_mov_b64 exec, -1')

def set_line(P, vz, v4, soff):
    P(f'v_mov_b32 v{vz}, s{S_NONCE}')
    P('s_mov_b32 exec_hi, 0')
    P(f'buffer_store_dword v{vz}, v{v4}, {rs(R_WS)}, s{soff} offen sc1', tag='flag')
    P('s_mov_b32 exec_hi, -1')

def out_of_line(P, branch, body):
    slow = P.label('slow'); back = P.label('back')
    P(f'{branch} {slow}')
    Q = Prog(); Q.vm, Q.lg, Q.hist = list(P.vm), list(P.lg), list(P.hist); Q.nlab = P.nlab
    Q(f'{slow}:'); body(Q, back); Q('s_nop 4'); Q(f's_branch {back}')
    P.nlab = Q.nlab
    if not hasattr(P, 'tail'): P.tail = []
    P.tail += Q.out
    P(f'{back}:')
def flush_tail(P):
    P.out += getattr(P, 'tail', []); P.tail = []

def check(P, loads, regs, sleep=4):
    def cmp(P):
        if len(regs) == 1: P(f'v_cmp_ne_u32 vcc, s{S_NONCE}, v{regs[0]}'); return
        a = regs[-1]; P(f'v_xor_b32 v{a}, s{S_NONCE}, v{a}')
        for r in regs[:-1]: P(f'v_bitop3_b32 v{a}, v{r}, s{S_NONCE}, v{a} bitop3:0xbe')
        P(f'v_cmp_ne_u32 vcc, 0, v{a}')
    def body(Q, back):
        rt = Q.label('rt')
        Q(f's_mov_b32 s{S_SPIN}, 0'); Q(f'{rt}:')
        for l in loads: Q(l)
        Q.wait(vm=0); cmp(Q); Q(f's_cbranch_vccz {back}')
        if sleep: Q(f's_sleep {sleep}')
        Q(f's_add_u32 s{S_SPIN}, s{S_SPIN}, 1'); Q(f's_cmp_lt_u32 s{S_SPIN}, {SPIN_MAX}'); Q(f's_cbranch_scc1 {rt}')
    cmp(P); out_of_line(P, 's_cbranch_vccnz', body)

class Stamper:
    def __init__(self, on, vreg): self.on = on; self.v = vreg; self.n = 0; self.names = []
    def __call__(self, P, name):
        if not self.on: return
        if self.n == 0 and opt('entry', 0):
            P(f'v_writelane_b32 v{self.v}, s90, 0'); P(f'v_writelane_b32 v{self.v}, s92, 32'); self.names.append('entry'); self.n = 1
        if len(P.lazy) >= 4: P.wait(lg=0)
        r = 94 + 4*(self.n & 1)
        P(f's_memrealtime s[{r}:{r+1}]'); P(f's_memtime s[{r+2}:{r+3}]')
        P.lazy += [f'v_writelane_b32 v{self.v}, s{r}, {self.n}', f'v_writelane_b32 v{self.v}, s{r+2}, {self.n+32}']
        self.names.append(name); self.n += 1
    def flush(self, P, vtmp, base=0):
        if not self.on: return
        P.wait(lg=0)
        P(f's_lshl_b32 s{S_STAMP+2}, s2, 2'); P(f's_add_u32 s{S_STAMP+2}, s{S_STAMP+2}, s{S_WAVE}')
        P(f's_lshl_b32 s{S_STAMP+2}, s{S_STAMP+2}, 8'); P(f's_add_u32 s{S_STAMP+2}, s{S_STAMP+2}, {WS_STAMP+base}')
        P(f'v_lshlrev_b32 v{vtmp}, 2, v0')
        P(f'buffer_store_dword v{self.v}, v{vtmp}, s[{R_WS}:{R_WS+3}], s{S_STAMP+2} offen')

def op_text(op): return op[0] if isinstance(op, tuple) else op
def op_cost(op):
    if callable(op): return 4
    mn = op_text(op).split()[0]
    if mn.startswith('s_'): return 4*len(op_text(op).strip().split('\n'))
    if mn.startswith('ds_write_b128'): return 16
    if mn.startswith('ds_write'): return 12
    if mn.startswith('ds_') or mn.startswith('buffer') or mn.replace('_e64', '') in TRANS: return 8
    if mn.startswith('v_mfma'): return 32 if '32x32' in mn else 16
    return 4
def is_valu(op): return (not callable(op)) and op_text(op).startswith('v_')
class Weave:
    def __init__(self, P): self.P = P; self.q = []; self.m = []; self.debt = 0
    def emit(self, op):
        P = self.P; n0 = len(P.out)
        if callable(op): op()
        elif isinstance(op, tuple): P(op[0], tag=op[1])
        else: P(op)
        if callable(op) or op_text(op).startswith('s_'): return 4*(len(P.out) - n0)
        return op_cost(op) + 4*max(0, len(P.out) - n0 - 1)
    def mfma(self, text, must=(), nm=1, extra=0):
        c = self.emit(text); per = op_cost(text)
        left = per - 4 - (c - per) + extra - self.debt; first = True
        for op in must: left -= self.emit(op); first = False
        k = 0
        while self.m:
            sc = op_text(self.m[0]).startswith('s_')
            if sc and left < op_cost(self.m[0]) and k >= nm: break
            if not sc and k >= nm: break
            op = self.m.pop(0); left -= self.emit(op); first = False
            if not sc: k += 1
        while self.q:
            if self.q[0] == 'BREAK': self.q.pop(0); break
            pen = 4 if (first and is_valu(self.q[0])) else 0
            cst = op_cost(self.q[0])
            if cst >= 16 and op_text(self.q[0]).startswith('v_mfma'):
                self.emit(self.q.pop(0)); left = cst - 4 + extra; first = True; continue
            if left < min(cst, 8) + pen: break
            left -= self.emit(self.q.pop(0)) + pen; first = False
        self.debt = 0
    def drain(self):
        while self.m: self.emit(self.m.pop(0))
        while self.q: self.emit(self.q.pop(0))

def hop(P, role):
    if not opt('hop', 1): return
    P('s_mov_b64 exec, 0')
    for w in range(1, 4): P(f's_cmp_eq_u32 s{S_WAVE}, {w}'); P(f's_cbranch_scc1 {role}_pg{w}')
    P(f's_branch {role}_pg0'); P(f'{role}_ret:'); P('s_mov_b64 exec, -1')
```

```python
from common import *
from g1 import silu_mul_ops
from g2 import gen_m1
NX = 4; NW = 4
XRING = 0; WRING = 65536
DS = [8, 9, 10, 11, 12, 13, 16, 17, 18, 19, 14, 15]
def dslot(sl): return 8192*DS[sl] if sl < 12 else 8192*(sl-12)
XS = 12*8192; VB = 16*8192
M32 = 'v_mfma_f32_32x32x16_bf16'
def q16(r): return f'v[{r}:{r+15}]'

def role_ffn(P, st, name):
    V = Alloc(1, 125); ACC = 128
    (sB, sJ, sA, sXo, sWo, sHo, sSt, sXl, sWl, sXoB, sFo, sE, sS2,
     sRp, sC, sHb, sDo, sDl, sJ0, sVo, sXo2, sSg0, sSg1, sH2, sH3, sD2, sFh, sFh2, sFh3, sFv, sDt, sO, sOb) = range(S_FREE, S_FREE+33)
    sHt = 22; TA = 4; TB = 16
    W = Weave(P); emit = W.emit
    P(f's_and_b32 s{S_T0}, s{S_XCD}, 1'); P(f's_lshl_b32 s{S_T0}, s{S_T0}, 2'); P(f's_and_b32 s{S_T1}, s{S_R}, 3'); P(f's_add_u32 s{sB}, s{S_T0}, s{S_T1}')
    P(f's_lshr_b32 s{S_T0}, s{S_XCD}, 1'); P(f's_and_b32 s{sA}, s{S_T0}, 1'); P(f's_mul_i32 s{S_T0}, s{S_T0}, 6'); P(f's_lshr_b32 s{S_T1}, s{S_R}, 2'); P(f's_add_u32 s{sJ}, s{S_T0}, s{S_T1}')
    P(f's_lshr_b32 s{sE}, s{S_XCD}, 2')
    P(f's_mul_i32 s{S_T1}, s{S_T1}, 27'); P(f's_lshr_b32 s{S_T1}, s{S_T1}, 4'); P(f's_and_b32 s{S_T0}, s{S_R}, 3'); P(f's_mul_i32 s{S_T0}, s{S_T0}, 5'); P(f's_lshr_b32 s{S_T0}, s{S_T0}, 1')
    P(f's_add_u32 s{sO}, s{S_T0}, s{S_T1}'); P(f's_and_b32 s{S_T0}, s{S_XCD}, 1'); P(f's_add_u32 s{sO}, s{sO}, s{S_T0}'); P(f's_add_u32 s{sO}, s{sO}, s{sE}')
    P(f's_sub_u32 s{S_T0}, s{sO}, 10'); P(f's_cmp_ge_u32 s{sO}, 10'); P(f's_cselect_b32 s{sO}, s{S_T0}, s{sO}')
    if not opt('rot1', 1): P(f's_mov_b32 s{sO}, 0')
    P(f's_lshl_b32 s{S_T0}, s{sB}, 2'); P(f's_lshl_b32 s{S_T1}, s{sA}, 1'); P(f's_add_u32 s{sS2}, s{S_T0}, s{S_T1}')
    P(f's_lshr_b32 s{S_T0}, s{S_WAVE}, 1'); P(f's_and_b32 s{S_T1}, s{S_WAVE}, 1'); P(f's_lshl_b32 s{S_T1}, s{S_T1}, 10')
    P(f's_add_u32 s{sXo}, s{S_T0}, s{S_T1}'); P(f's_add_u32 s{sXo}, s{sXo}, s{sS2}'); P(f's_mul_i32 s{sXo}, s{sXo}, 10'); P(f's_add_u32 s{sXo}, s{sXo}, s{sO}'); P(f's_lshl_b32 s{sXo}, s{sXo}, 7')
    P(f's_add_u32 s{S_T0}, s{S_T0}, s{sO}'); P(f's_cmp_eq_u32 s{S_T0}, 10'); P(f's_cselect_b32 s{S_T0}, 0, s{S_T0}'); P(f's_lshr_b32 s{sOb}, s{S_T0}, 1')
    P(f's_xor_b32 s{S_T3}, s{sS2}, 2'); P(f's_add_u32 s{S_T3}, s{S_T3}, s{sE}')
    P(f's_add_u32 s{sXoB}, s{S_T1}, s{S_T3}'); P(f's_mul_i32 s{sXoB}, s{sXoB}, 1280'); P(f's_lshl_b32 s{S_T0}, s{S_T0}, 7'); P(f's_add_u32 s{sXoB}, s{sXoB}, s{S_T0}')
    P(f's_lshl_b32 s{sXl}, s{S_WAVE}, 12'); P(f's_add_u32 s{sWl}, s{sXl}, {WRING}')
    P(f's_lshl_b32 s{sWo}, s{sO}, 2'); P(f's_add_u32 s{sWo}, s{sWo}, s{S_WAVE}'); P(f's_mul_i32 s{sWo}, s{sWo}, {16*3072}'); P(f's_lshl_b32 s{S_T0}, s{sJ}, 7'); P(f's_add_u32 s{sWo}, s{sWo}, s{S_T0}')
    vxd = V(4); vwd = V(4); t0 = V(1, 2); t1 = V(); t2 = V()
    P(f'v_lshrrev_b32 v{t0}, 3, v0'); P(f'v_and_b32 v{t1}, 7, v0'); P(f'v_lshrrev_b32 v{t2}, 4, v0')
    P(f'v_xor_b32 v{t2}, v{t2}, v{t1}'); P(f'v_lshlrev_b32 v{t2}, 4, v{t2}')
    P(f'v_mul_u32_u24 v{vxd}, 40960, v{t0}'); P(f'v_add_u32 v{vxd}, v{vxd}, v{t2}')
    P(f'v_xor_b32 v{vxd+1}, 64, v{vxd}'); P(f'v_add_u32 v{vxd+1}, {8*40960-1024}, v{vxd+1}')
    P(f'v_add_u32 v{vxd+2}, {16*40960-2048}, v{vxd}'); P(f'v_add_u32 v{vxd+3}, {16*40960-2048}, v{vxd+1}')
    P(f'v_and_b32 v{t2}, 2, v{t0}'); P(f'v_xor_b32 v{t2}, v{t2}, v{t1}'); P(f'v_lshlrev_b32 v{t2}, 4, v{t2}')
    P(f'v_mul_u32_u24 v{vwd}, 3072, v{t0}'); P(f'v_add_u32 v{vwd}, v{vwd}, v{t2}')
    P(f'v_add_u32 v{vwd+1}, {8*3072-1024}, v{vwd}')
    P(f'v_xor_b32 v{vwd+2}, 64, v{vwd}'); P(f'v_xor_b32 v{vwd+3}, 64, v{vwd+1}')
    vdd = V(2); vvd = V(4); vfh = V(); vfv = V(); vfl = V()
    P(f'v_and_b32 v{t2}, 2, v{t0}'); P(f'v_lshlrev_b32 v{t2}, 1, v{t2}'); P(f'v_xor_b32 v{t2}, v{t2}, v{t1}'); P(f'v_lshlrev_b32 v{t2}, 4, v{t2}')
    P(f'v_mul_u32_u24 v{vdd}, 1280, v{t0}'); P(f'v_add_u32 v{vdd}, v{vdd}, v{t2}'); P(f'v_add_u32 v{vdd+1}, {8*1280-1024}, v{vdd}')
    P(f'v_mul_u32_u24 v{vvd}, 640, v{t0}'); P(f'v_add_u32 v{vvd}, v{vvd}, v{t2}')
    for i in range(1, 4): P(f'v_add_u32 v{vvd+i}, {i*(8*640-1024)}, v{vvd}')
    if opt('dpf', 1):
        P(f's_lshr_b32 s{S_T1}, s{S_R}, 2'); P(f's_mul_i32 s{S_T1}, s{S_T1}, 27'); P(f's_lshr_b32 s{S_T1}, s{S_T1}, 4'); P(f's_add_u32 s{S_T1}, s{S_T1}, s{sE}')
        P(f's_lshr_b32 s{S_T0}, s{S_WAVE}, 1'); P(f's_mul_i32 s{S_T0}, s{S_T0}, 5'); P(f's_add_u32 s{S_T1}, s{S_T1}, s{S_T0}'); P(f's_add_u32 s{S_T1}, s{S_T1}, 4')
        P(f's_sub_u32 s{S_T0}, s{S_T1}, 10'); P(f's_cmp_ge_u32 s{S_T1}, 10'); P(f's_cselect_b32 s{S_T1}, s{S_T0}, s{S_T1}')
        P(f's_lshl_b32 s{S_T1}, s{S_T1}, 3'); P(f's_add_u32 s{S_T1}, s{S_T1}, s{sB}'); P(f's_mul_i32 s{S_T1}, s{S_T1}, {8*3072}'); P(f's_lshl_b32 s{S_T0}, s{sJ}, 7'); P(f's_add_u32 s{sDt}, s{S_T1}, s{S_T0}')
    args(P)
    srd(P, R_A, P_WG, WGB); srd(P, R_B, P_WU, WGB, back=2048)
    TB = 6; P(f's_movk_i32 s{TB}, 128'); P(f's_movk_i32 s{TB+1}, 256'); P(f's_mov_b32 s{TB+2}, {64*3072}')
    def dma_x(g):
        ops = [f's_add_u32 m0, s{sXl}, {XRING + (g % NX)*16384}']
        for i in range(4): ops.append((f'buffer_load_dwordx4 v{vxd+i}, {rs(R_X)}, s{sXo} offen offset:{1024*i} lds', f'x{g}'))
        if g == 9: ops.append(f's_mov_b32 s{sXo}, s{sXoB}')
        elif g == 14: ops += [f's_mul_i32 s{sXo}, s{sE}, -2560', f's_add_u32 s{sXo}, s{sXo}, s{sXoB}', f's_add_u32 s{sXo}, s{sXo}, 1280']
        elif g < 9: ops.append(f's_cmp_eq_u32 s{sO}, {9-g}\ns_cselect_b32 s{sDt}, {-9*128}, s{TB}\ns_add_u32 s{sXo}, s{sXo}, s{sDt}')
        elif g < 19: ops.append(f's_cmp_eq_u32 s{sOb}, {4 - g % 5}\ns_cselect_b32 s{sDt}, {-8*128}, s{TB+1}\ns_add_u32 s{sXo}, s{sXo}, s{sDt}')
        return ops
    def dma_w(g):
        ops = [f's_add_u32 m0, s{sWl}, {(g % NW)*16384}']
        for i in range(4):
            ops.append((f'buffer_load_dwordx4 v{vwd+i}, {rs(R_A if i < 2 else R_B)}, s{sWo} offen offset:{1024*i} lds', f'w{g}'))
        if g < 9: ops.append(f's_cmp_eq_u32 s{sO}, {9-g}\ns_cselect_b32 s{sDt}, {-9*64*3072}, s{TB+2}\ns_add_u32 s{sWo}, s{sWo}, s{sDt}')
        return ops
    def dpf():
        if not opt('dpf', 1): return
        P(f's_bitcmp1_b32 s{S_WAVE}, 0'); P(f's_cselect_b64 s[{R_C}:{R_C+1}], s[{P_WU}:{P_WU+1}], s[{P_WG}:{P_WG+1}]'); P(f's_mov_b32 s{R_C+2}, {WGB}'); P(f's_mov_b32 s{R_C+3}, 0x20000')
        P(f'buffer_load_dword v126, v{vwd}, {rs(R_C)}, s{sDt} offen')
    startq = dma_x(0) + dma_w(0) + dma_x(1) + dma_w(1)
    def pop_start(k):
        while startq and k > 0:
            op = startq.pop(0); emit(op)
            if isinstance(op, tuple): k -= 1
    dpf(); pop_start(opt('p0', 8))
    st(P, 'start')
    srd(P, R_C, P_WD, WDB); srd(P, R_D, P_OUT, XB)
    P(f's_lshl_b32 s{S_T0}, s{sJ}, 2'); P(f's_add_u32 s{sJ}, s{S_T0}, s{S_WAVE}')
    P(f's_lshr_b32 s5, s{S_XCD}, 1'); P(f's_lshl_b32 s5, s5, 3'); P(f's_add_u32 s5, s5, s{sJ}'); P(f's_lshl_b32 s5, s5, {FSH}'); P(f's_add_u32 s5, s5, {WS_FH}')
    def offs(s2reg):
        return [f's_mul_i32 s{sHo}, s{s2reg}, 192', f's_add_u32 s{sHo}, s{sHo}, s{sJ}', f's_lshl_b32 s{sHo}, s{sHo}, 10', f's_add_u32 s{sHo}, s{sHo}, {WS_H}']
    def offf(s2reg):
        return [f's_lshl_b32 s{sFo}, s{s2reg}, {7+FSH}', f's_add_u32 s{sFo}, s{sFo}, s5']
    def offst(s2reg): return [f's_lshl_b32 s{sSt}, s{s2reg}, 10', f's_add_u32 s{sSt}, s{sSt}, {WS_STAT}']
    for op in offs(sS2) + offf(sS2) + offst(sS2): P(op)
    P(f's_xor_b32 s{sB}, s{sS2}, 2'); P(f's_add_u32 s{sB}, s{sB}, s{sE}'); P(f's_xor_b32 s{sA}, s{sB}, 1')
    P(f's_lshl_b32 s{S_T0}, s{S_XCD}, 1'); P(f's_and_b32 s{sJ0}, s{S_R}, 1'); P(f's_add_u32 s{sRp}, s{S_T0}, s{sJ0}')
    P(f's_lshr_b32 s{sC}, s{S_R}, 1'); P(f's_sub_u32 s{S_T0}, s{sC}, 10'); P(f's_cmp_ge_u32 s{sC}, 10'); P(f's_cselect_b32 s{sC}, s{S_T0}, s{sC}')
    P(f's_sub_u32 s{S_T0}, s{sC}, 5'); P(f's_cmp_ge_u32 s{sC}, 5'); P(f's_cselect_b32 s{S_T1}, s{S_T0}, s{sC}'); P(f's_cselect_b32 s{S_T2}, 0x80008000, 0')
    P(f's_cmp_ge_u32 s{S_T1}, 3'); P(f's_cselect_b32 s{sSg0}, 0x80008000, 0'); P(f's_xor_b32 s{sSg0}, s{sSg0}, s{S_T2}')
    P(f's_cmp_ge_u32 s{S_T1}, 2'); P(f's_cselect_b32 s{sSg1}, 0x80008000, 0'); P(f's_xor_b32 s{sSg1}, s{sSg1}, s{S_T2}')
    P(f's_lshl_b32 s{S_T3}, s{sRp}, 2'); P(f's_add_u32 s{S_T3}, s{S_T3}, s{S_WAVE}')
    P(f's_mul_i32 s{S_T0}, s{S_T3}, 40960'); P(f's_lshl_b32 s{S_T1}, s{S_T1}, 7'); P(f's_add_u32 s{S_T0}, s{S_T0}, s{S_T1}'); P(f's_add_u32 s{sVo}, s{S_T0}, {WS_V}')
    P(f's_mul_i32 s{S_T0}, s{S_T3}, {96*1024}'); P(f's_add_u32 s{S_T0}, s{S_T0}, {WS_H}')
    P(f's_mul_i32 s{S_T2}, s{sJ0}, {24*1024}'); P(f's_add_u32 s{sHb}, s{S_T0}, s{S_T2}')
    P(f's_xor_b32 s{S_T1}, s{sJ0}, 1'); P(f's_and_b32 s{S_T2}, s{S_WAVE}, 2'); P(f's_add_u32 s{S_T1}, s{S_T1}, s{S_T2}'); P(f's_xor_b32 s{S_T2}, s{S_T1}, 2')
    P(f's_mul_i32 s{sH2}, s{S_T1}, {24*1024}'); P(f's_add_u32 s{sH2}, s{sH2}, s{S_T0}'); P(f's_mul_i32 s{sH3}, s{S_T2}, {24*1024}'); P(f's_add_u32 s{sH3}, s{sH3}, s{S_T0}')
    P(f's_lshr_b32 s{S_T0}, s{S_T3}, 1'); P(f's_lshl_b32 s{S_T0}, s{S_T0}, {7+FSH}'); P(f's_add_u32 s{S_T0}, s{S_T0}, {WS_FH}')
    P(f's_lshl_b32 s{sFh2}, s{S_T1}, {5+FSH}'); P(f's_add_u32 s{sFh2}, s{sFh2}, s{S_T0}'); P(f's_lshl_b32 s{sFh3}, s{S_T2}, {5+FSH}'); P(f's_add_u32 s{sFh3}, s{sFh3}, s{S_T0}')
    P(f's_lshl_b32 s{S_T0}, s{sRp}, 3'); P(f's_add_u32 s{S_T0}, s{S_T0}, s{sJ0}'); P(f's_lshl_b32 s{S_T0}, s{S_T0}, {5+FSH}'); P(f's_add_u32 s{sFh}, s{S_T0}, {WS_FH}')
    P(f's_mul_i32 s{S_T0}, s{S_WAVE}, {16*1280}'); P(f's_lshl_b32 s{S_T2}, s{sC}, 7'); P(f's_add_u32 s{S_T0}, s{S_T0}, s{S_T2}')
    P(f's_mul_i32 s{S_T2}, s{sJ0}, {384*1280}'); P(f's_add_u32 s{sDo}, s{S_T0}, s{S_T2}')
    P(f's_sub_u32 s{sD2}, s{S_T0}, s{S_T2}'); P(f's_add_u32 s{sD2}, s{sD2}, {384*1280}')
    P(f's_lshl_b32 s{sDl}, s{S_WAVE}, 11')
    TA = 9; TC = 4
    P(f's_mul_i32 s{S_T0}, s{sC}, {opt("rota", 20)}'); P(f's_lshr_b32 s{S_T0}, s{S_T0}, 4')
    for i in range(12):
        P(f's_add_u32 s{S_T1}, s{S_T0}, {i}'); P(f's_cmp_ge_u32 s{S_T1}, 12'); P(f's_cselect_b32 s{S_T2}, -12, 0'); P(f's_add_u32 s{S_T1}, s{S_T1}, s{S_T2}')
        P(f's_cmp_ge_u32 s{S_T1}, 6'); P(f's_cselect_b32 s{S_T2}, 6, 0'); P(f's_add_u32 s{S_T1}, s{S_T1}, s{S_T2}'); P(f's_lshl_b32 s{TA+i}, s{S_T1}, 12')
    P(f's_mul_i32 s{S_T0}, s{sC}, {opt("rotb", 10)}'); P(f's_lshr_b32 s21, s{S_T0}, 4')
    P(f's_lshr_b32 s{S_T0}, s{S_WAVE}, 1'); P(f's_and_b32 s{S_T1}, s{S_WAVE}, 1'); P(f's_lshl_b32 s{S_T2}, s{S_T1}, 10'); P(f's_add_u32 s{S_T0}, s{S_T0}, s{S_T2}')
    P(f's_lshl_b32 s{S_T2}, s{sRp}, 1'); P(f's_add_u32 s{S_T0}, s{S_T0}, s{S_T2}'); P(f's_mul_i32 s{S_T0}, s{S_T0}, 1280')
    P(f's_lshl_b32 s{S_T2}, s{sC}, 7'); P(f's_add_u32 s{sXo2}, s{S_T0}, s{S_T2}')
    P(f's_lshl_b32 s{S_T1}, s{S_T1}, 2'); P(f's_lshr_b32 s{S_T0}, s{sRp}, 2'); P(f's_add_u32 s{S_T0}, s{S_T0}, s{S_T1}'); P(f's_lshl_b32 s{S_T0}, s{S_T0}, 12'); P(f's_add_u32 s{sFv}, s{S_T0}, {WS_FV}')
    P(f'v_min_u32 v{t2}, 47, v0'); P(f'v_add_u32 v{vfh}, 40, v{t2}'); P(f'v_cmp_gt_u32 vcc, 24, v{t2}'); P(f'v_cndmask_b32 v{vfh}, v{vfh}, v{t2}, vcc'); P(f'v_lshlrev_b32 v{vfh}, {FSH}, v{vfh}')
    P(f'v_lshrrev_b32 v{vfv}, 1, v0'); P(f'v_lshlrev_b32 v{vfv}, 7, v{vfv}')
    vxr = V(4); vwr = V(); vlin = V(); vst = V()
    P(f'v_and_b32 v{t0}, 31, v0'); P(f'v_lshrrev_b32 v{t1}, 5, v0'); P(f'v_bfe_u32 v{t2}, v0, 1, 3')
    P(f'v_xor_b32 v{t1}, v{t1}, v{t2}'); P(f'v_lshlrev_b32 v{t1}, 4, v{t1}'); P(f'v_lshl_add_u32 v{vxr}, v{t0}, 7, v{t1}')
    for ks in range(1, 4): P(f'v_xor_b32 v{vxr+ks}, {32*ks}, v{vxr}')
    P(f'v_lshlrev_b32 v{vst}, 4, v{t0}'); P(f'v_lshlrev_b32 v{vlin}, 4, v0')
    P(f'v_bfe_u32 v{t0}, v0, 3, 2'); P(f'v_xor_b32 v{t0}, s{S_WAVE}, v{t0}'); P(f'v_lshlrev_b32 v{vwr}, 5, v{t0}')
    P(f'v_and_b32 v{t0}, 3, v0'); P(f'v_lshl_add_u32 v{vwr}, v{t0}, 3, v{vwr}')
    P(f'v_bfe_u32 v{t0}, v0, 2, 2'); P(f'v_lshl_add_u32 v{vwr}, v{t0}, 7, v{vwr}')
    P(f'v_bfe_u32 v{t0}, v0, 4, 1'); P(f'v_lshl_add_u32 v{vwr}, v{t0}, 11, v{vwr}')
    P(f'v_lshrrev_b32 v{t0}, 5, v0'); P(f'v_lshl_add_u32 v{vwr}, v{t0}, 10, v{vwr}')
    P(f'v_add_u32 v{vwr}, {WRING}, v{vwr}')
    vtr = V(2); vx2 = V(); M1A = 208
    P(f'v_and_b32 v{t0}, 1, v0'); P(f'v_lshlrev_b32 v{vtr}, 5, v{t0}')
    P(f'v_bfe_u32 v{t0}, v0, 1, 1'); P(f'v_lshl_add_u32 v{vtr}, v{t0}, 3, v{vtr}')
    P(f'v_bfe_u32 v{t0}, v0, 4, 1'); P(f'v_lshl_add_u32 v{vtr}, v{t0}, 4, v{vtr}')
    P(f'v_bfe_u32 v{t0}, v0, 3, 1'); P(f'v_lshl_add_u32 v{vtr}, v{t0}, 6, v{vtr}')
    P(f'v_bfe_u32 v{t0}, v0, 2, 2'); P(f'v_lshl_add_u32 v{vtr}, v{t0}, 7, v{vtr}')
    P(f'v_lshrrev_b32 v{t0}, 5, v0'); P(f'v_lshl_add_u32 v{vtr}, v{t0}, 9, v{vtr}'); P(f'v_xor_b32 v{vtr+1}, 64, v{vtr}')
    P(f'v_and_b32 v{t0}, 31, v0'); P(f'v_lshrrev_b32 v{t1}, 5, v0'); P(f'v_lshlrev_b32 v{t1}, 1, v{t1}'); P(f'v_bfe_u32 v{t2}, v0, 1, 3')
    P(f'v_xor_b32 v{t2}, v{t1}, v{t2}'); P(f'v_lshlrev_b32 v{t2}, 4, v{t2}'); P(f'v_lshl_add_u32 v{vx2}, v{t0}, 7, v{t2}')
    P(f's_add_u32 s{S_T0}, s{sXl}, {XS}'); P(f'v_add_u32 v{vx2}, s{S_T0}, v{vx2}')
    mk = V.mark()
    sel = V(4); cs = V(4); ka = V(4); kb = V(4); xf = V(32); stat = V(16); m1 = xf; tmp = V(8); hp = V(8)
    vs1, vh = hp, hp+1
    P(f's_and_b32 s{S_T1}, s{S_WAVE}, 1'); P(f's_lshl_b32 s{S_T1}, s{S_T1}, 5')
    P(f'v_add_u32 v{t0}, s{S_T1}, v{t0}'); P(f'v_cvt_f32_u32 v{vs1}, v{t0}'); P(f'v_mul_f32 v{vs1}, {fl(1/64)}, v{vs1}'); P(f'v_cvt_f32_u32 v{vh}, v{t1}')
    P(f'v_mov_b32 v{tmp+5}, {fl(32.0)}'); P('v_cmp_gt_u32 vcc, 32, v0')
    for op in gen_m1(P, m1, vs1, tmp, None, vh): P(op)
    for i in range(16):
        P(f'v_accvgpr_write_b32 a{M1A+i}, v{m1+i}'); P(f'v_xor_b32 v{m1+16+i}, s{sSg0}, v{m1+i}'); P(f'v_xor_b32 v{m1+i}, s{sSg1}, v{m1+i}')
    for i in range(16): P(f'v_accvgpr_write_b32 a{M1A+16+i}, v{m1+16+i}'); P(f'v_accvgpr_write_b32 a{M1A+32+i}, v{m1+i}')
    P(f'v_lshrrev_b32 v{t0}, 2, v0'); P(f'v_lshrrev_b32 v{t1}, 4, v0'); P(f'v_xor_b32 v{t0}, v{t0}, v{t1}'); P(f'v_and_b32 v{t0}, 1, v{t0}')
    P(f'v_add_u32 v{t0}, -1, v{t0}'); P(f'v_and_b32 v{sel}, 0x3f803f80, v{t0}')
    for i in range(1, 4): P(f'v_mov_b32 v{sel+i}, v{sel}'); P(f'v_mov_b32 v{ka+i}, 0'); P(f'v_mov_b32 v{kb+i}, 0')
    nonce(P)
    st(P, 'setup')
    hop(P, 'ffn')
    pop_start(opt('p2', 8))
    P('s_branch ffn_main'); P.raw('.p2align 12'); P('ffn_main:')
    def step(n, i):
        if n < 40: return i, n, i, n % 4
        m = n - 40; sub, m = divmod(m, 20); gb, u = divmod(m, 4)
        return 4 + 2*sub + (i & 1), 8*gb + 2*u + (i >> 1), (i & 1) + 2*(u >> 1), 2*(u & 1) + (i >> 1)
    def rd_x(n, i):
        _, _, blk, ks = step(n, i)
        return (f'ds_read_b128 {q4(xf+16*(n&1)+4*i)}, v{vxr+ks} offset:{XRING + ((n//4) % NX)*16384 + blk*4096}', f'rx{i}')
    def rd_w(n, q):
        g, ks = divmod(n, 4)
        return (f'ds_read_b64_tr_b16 {q2(4*n+2*q, "a")}, v{vwr} offset:{(g % NW)*16384 + ks*4096 + q*512}', 'rw')
    sreg = [stat, stat+4, stat+8, stat+12, sel, sel+4, stat, stat+4]
    def ld_stat(ts): return [f'buffer_load_dwordx4 {q4(sreg[t])}, v{vst}, {rs(R_WS)}, s{sSt} offen offset:{512*i} sc1' for i, t in enumerate(ts)]
    def chk_stat(ts): return lambda: check(P, ld_stat(ts), [sreg[t]+3 for t in ts], sleep=8)
    def epi(ts, tag):
        def pre(t): return [f'v_mov_b32 v{kb}, v{sreg[t]}', f'{M32} {q16(ACC+16*t)}, {q4(ka)}, {q4(kb)}, {q16(ACC+16*t)}']
        kb2 = hp + 4
        seq = [f'v_mov_b32 v{kb}, v{sreg[ts[0]]}', 'BREAK', pre(ts[0])[1], f'v_mov_b32 v{kb}, v{sreg[ts[1]]}', 'BREAK', pre(ts[1])[1], 'BREAK']
        for i, t in enumerate(ts):
            o = hp + 4*(t & 1)
            b = silu_mul_ops(ACC+16*t, sreg[t]+1, sreg[t]+2, tmp, o)
            b.append((f'buffer_store_dwordx4 {q4(o)}, v{vlin}, {rs(R_WS)}, s{sHo} offen' + ('' if opt('xplain', 0) else ' sc1'), tag) if not opt('xnost', 0) else (f's_mov_b32 s{S_SPIN}, 0', tag))
            if i + 1 < len(ts): b.append(f's_add_u32 s{sHo}, s{sHo}, {96*1024}')
            if i + 2 < len(ts): b.insert(8, pre(ts[i+2])[0]); b.insert(12, pre(ts[i+2])[1])
            seq += b
        return seq
    caug = [f'v_cvt_pk_bf16_f32 v{ka}, 0, v{cs}', f'v_cmp_gt_u32 vcc, 32, v0', f'v_sub_f32 v{t0}, v{cs}, v{ka}',
            f'v_cvt_pk_bf16_f32 v{ka}, v{cs}, v{t0}', f'v_cndmask_b32 v{ka}, 0, v{ka}, vcc']
    def flag_h(tag, nxt):
        P.wait_tag(tag); set_flag(P, t0, sFo)
        if nxt:
            for op in offf(nxt): P(op)
    def rot(sl, r=sDt):
        if sl < 12: return ''
        i = sl % 6
        return f's_cmp_ge_u32 s21, {6-i}\ns_cselect_b32 s{r}, {i-6}, {i}\ns_add_u32 s{r}, s{r}, s21\ns_lshl_b32 s{r}, s{r}, 12\n'
    def dma_d(sl):
        ops = [f's_add_u32 m0, s{sDl}, {dslot(sl)}', rot(sl) + f's_mul_i32 s{sDt}, s{TA+sl if sl < 12 else sDt}, 20\ns_add_u32 s{sDt}, s{sDt}, s{sDo if sl < 12 else sD2}' + (f'\ns_add_u32 s{sDt}, s{sDt}, {12*64*1280}' if sl >= 18 else '')]
        for i in range(0 if opt('xnod', 0) else 2): ops.append((f'buffer_load_dwordx4 v{vdd+i}, {rs(R_C)}, s{sDt} offen offset:{1024*i} lds', f'd{sl}'))
        return ops
    HD = 32
    def hreg(n): return (160 + 4*(n % HD)) % M1A
    def ld_h(n):
        sl, ks = divmod(n, 4); ops = []
        if ks == 0: ops.append(rot(sl, sHt) + f's_add_u32 s{sHt}, s{TA+sl if sl < 12 else sHt}, s{(sHb, sHb, sH2, sH3)[sl//6]}')
        ops.append((f'buffer_load_dwordx4 {q4(hreg(n), "a")}, v{vlin}, {rs(R_WS)}, s{sHt} offen offset:{1024*ks} sc1', 'h'))
        return ops
    def ld_f(vo, so): return f'buffer_load_dword v{vfl}, v{vo}, {rs(R_WS)}, s{so} offen sc1'
    P.wait_tag('x0', 'w0'); P('s_barrier')
    st(P, 'first')
    for op in [rd_w(0, 0), rd_w(0, 1)] + [rd_x(0, t) for t in range(4)]: emit(op)
    W.m = startq + dma_x(2) + dma_w(2) + dma_x(3) + dma_w(3)
    def queued(tag): return any(isinstance(o, tuple) and o[1] == tag for o in W.m)
    def nvm(): return len([o for o in W.m if not op_text(o).startswith('s_')])
    DORD = [6, 7, 8, 9, 4, 5, 10, 11, 0, 1, 2, 3] + list(range(12, 20))
    PACE = dict(zip(range(5, 20), map(int, opt('pace', '011111111122222'))))
    nd = 0; done = {}; flagged = set()
    NHA = opt('nha', 74)
    for n in range(80):
        g, ks = divmod(n, 4); last = (n == 79)
        ex = opt('exa', 0) if n < 40 else opt('exb', 8) if n < 60 else opt('exc', 0)
        def mf(i, must=(), nm=0, extra=0):
            t, kk, _, _ = step(n, i); acc = ACC + 16*t
            W.mfma(f'{M32} {q16(acc)}, {q4(4*kk, "a")}, {q4(xf+16*(n&1)+4*i)}, {"0" if kk == 0 else q16(acc)}', must=must, nm=nm, extra=extra)
        wn = [rd_w(n+1, 0), rd_w(n+1, 1)] if n + 1 < 40 else []
        if n == opt('nstat', 32): W.m += ld_stat([0, 1, 2, 3])
        if n == 41: W.q += caug + [chk_stat([0, 1, 2, 3])] + offst(sB) + epi([0, 1, 2, 3], 'hA') + offs(sB)
        if n == 48: W.m += ld_stat([4, 5])
        if n == 61: W.q += [chk_stat([4, 5])] + offst(sA) + ld_stat([6, 7]) + epi([4, 5], 'hB') + offs(sA)
        for tag, n0 in (('hA', 41), ('hB', 61)):
            if n > n0 and tag not in done and not any(isinstance(o, tuple) and o[1] == tag for o in W.q): done[tag] = n
        if n == NHA: W.m.append(ld_f(vfh, sFh))
        big = nvm() > opt('big', 6)
        rx = [] if last else [rd_x(n+1, i) for i in range(4)]
        def sync():
            nonlocal nd
            assert not queued(f'x{g+1}') and not queued(f'w{g+1}')
            P.wait_tag(f'x{g+1}', f'w{g+1}'); P('s_barrier')
            if g + NX < 20: W.m += dma_x(g+NX)
            if g + NW < 10: W.m += dma_w(g+NW)
            for _ in range(PACE.get(g, 0)):
                sl = DORD[nd]; nd += 1
                assert g >= (5 if 6 <= sl < 10 else {4: 6, 5: 6, 10: 7, 11: 7, 0: 8, 1: 8, 2: 9, 3: 9}[sl] if sl < 12 else 16 + (sl - 12)//2)
                W.m += dma_d(sl)
        P.wait(lg=0)
        sy = [sync] if ks == 3 else []
        if wn:
            mf(0, sy + wn + ([] if sy else rx[:1]), 0, ex)
            mf(1, rx[0 if sy else 1:3], 0 if sy else (1 if big else 0), ex)
            mf(2, rx[3:], 1, ex)
            mf(3, [], 2 if (big and sy) else 1, ex)
        else:
            mf(0, sy + rx[:2], 0, ex)
            mf(1, rx[2:], 0, ex)
            mf(2, [], 1, ex)
            mf(3, [], 2 if big else 1, ex - 4)
        for tag, nxt in (('hA', sB), ('hB', sA)):
            if tag in done and tag not in flagged and n >= done[tag] + opt('fdel', 8):
                flag_h(tag, nxt); flagged.add(tag)
        if n < 40: W.mfma(f'v_mfma_f32_16x16x32_bf16 {q4(cs)}, {q4(sel)}, {q4(4*n, "a")}, {"0" if n == 0 else q4(cs)}', nm=0, extra=-4)
        if n % 8 == 7 and n < 79: st(P, f'n{n}')
    print('epilogues done at', done, 'left', len(W.m), len(W.q), flagged)
    assert 'hA' in flagged and nd >= 12 and not W.q
    later = [op for sl in DORD[nd:] for op in dma_d(sl)]
    st(P, 'phB')
    chk_stat([6, 7])()
    LEAD = opt('lead', 24)
    nh = 0; c = 0; checked = False
    for op in epi([6, 7], 'hC'):
        if op == 'BREAK': continue
        c += emit(op)
        if c >= opt('esp', 56):
            c = 0
            if 'hB' not in flagged: flag_h('hB', sA); flagged.add('hB')
            elif not checked and not any(op_text(o).startswith('buffer_load_dword v') for o in W.m): check(P, [ld_f(vfh, sFh)], [vfl]); checked = True; st(P, 'hA')
            elif W.m:
                while W.m and emit(W.m.pop(0)) < 8: pass
            else:
                for o in ld_h(nh): emit(o)
                nh += 1
    assert checked and nh <= 12
    W.drain()
    P(f'v_min_u32 v{vfh}, 23, v0'); P(f'v_lshlrev_b32 v{vfh}, {FSH}, v{vfh}')
    st(P, 'epiB'); P.wait(lg=0)
    P(f's_cmp_ge_u32 s{S_R}, 20'); P(f's_cbranch_scc1 {name}_help')
    vm, lg, hist = list(P.vm), list(P.lg), list(P.hist)
    V.release(mk)
    wf = V(24); m1n = V(16); vtm = V(2); vth = V(2); vt2 = V(2); vt3 = V(2); vtv = V(2); vxs = V(4); vor = V()
    SAC = 160; XF = 192; XP = 224; TQ = 224; tmp2 = m1n
    while nh < opt('lead0', 24):
        for o in ld_h(nh): emit(o)
        nh += 1
    for i in range(2): P(f'v_add_u32 v{vtm+i}, 65536, v{vtr+i}')
    def rd_d(n, dt, q):
        sl, ks = divmod(n, 4); r = wf + 8*(n % 3) + 4*dt + 2*q
        if sl < 12: ad = dslot(sl); b = (vtm, vth)[(ad >> 16) - 1]; ad &= 65535
        else: b = (vt2, vt3)[(sl - 12)//6]; ad = ((sl - 12) % 6)*8192
        return (f'ds_read_b64_tr_b16 {q2(r)}, v{b+dt} offset:{ad + ks*2048 + q*1024}', f'rd{n%3}')
    P.wait_tag(*[f'd{i}' for i in range(12)]); P('s_barrier')
    for n in range(2):
        for dt in range(2):
            for q in range(2): emit(rd_d(n, dt, q))
    W.q = [f'v_add_u32 v{vth+i}, 131072, v{vtr+i}' for i in range(2)] + \
          [f's_lshr_b32 s{S_T3}, s{S_WAVE}, 1', f's_mul_i32 s{S_T2}, s{S_T3}, 49152'] + [f'v_add_u32 v{vt2+i}, s{S_T2}, v{vtr+i}' for i in range(2)] + \
          [f's_sub_u32 s{S_T2}, 49152, s{S_T2}'] + [f'v_add_u32 v{vt3+i}, s{S_T2}, v{vtr+i}' for i in range(2)] + \
          [f's_lshl_b32 s{S_T3}, s{S_T3}, 14', f's_add_u32 s{S_T3}, s{S_T3}, {VB}', f'v_add_u32 v{vtv}, s{S_T3}, v{vtr}', f'v_add_u32 v{vtv+1}, s{S_T3}, v{vtr+1}',
           f's_add_u32 s{S_T3}, s{sXl}, {XS}', f'v_add_u32 v{vor}, s{S_T3}, v{vlin}', f'v_mov_b32 v{vxs}, v{vx2}',
           f'v_xor_b32 v{vxs+1}, 16, v{vx2}', f'v_xor_b32 v{vxs+2}, 64, v{vx2}', f'v_xor_b32 v{vxs+3}, 80, v{vx2}']
    vdma = []
    for hf in range(2):
        vdma.append(f's_lshl_b32 s{S_T2}, s{S_WAVE}, 13'); vdma.append(f's_add_u32 m0, s{S_T2}, {VB + 4096*hf}')
        for i in range(4): vdma.append((f'buffer_load_dwordx4 v{vvd+i}, {rs(R_WS)}, s{sVo} offen offset:{1024*i} sc1 lds', 'v'))
        vdma.append(f's_add_u32 s{sVo}, s{sVo}, {32*640}')
    xdma = [f's_add_u32 m0, s{sXl}, {XS}'] + [(f'buffer_load_dwordx4 v{vxd+i}, {rs(R_X)}, s{sXo2} offen offset:{1024*i} lds', 'x') for i in range(4)]
    xrd = [f'ds_read_b128 {q4(XP+4*i)}, v{vxs+i}' for i in range(4)]
    xun = []
    for i in range(16):
        xun.append(f'v_lshlrev_b32 v{XF+2*i}, 16, v{XP+i}'); xun.append(f'v_and_b32 v{XF+2*i+1}, 0xffff0000, v{XP+i}')
    NFC = opt('nfc', 0); NV = opt('nv', 78); NB = opt('nb', 24); NC = opt('nc', 52); PD = opt('pd', 12)
    lim = 48; W.m = later
    for n in range(96):
        def mf(dt, must, nm):
            acc = ACC + 16*dt; r = wf + 8*(n % 3) + 4*dt
            W.mfma(f'{M32} {q16(acc)}, {q4(r)}, {q4(hreg(n), "a")}, {"0" if n == 0 else q16(acc)}', must=must, nm=nm, extra=opt('exg', 4))
        if n == NFC: flag_h('hC', None); st(P, 'flagC')
        for nn, vo, so, nm_ in ((NB, vfh, sFh2, 'hB'), (NC, vfh, sFh3, 'hC'), (NV, vfv, sFv, 'V')):
            if n == nn - PD: P(ld_f(vo, so))
            if n == nn:
                check(P, [ld_f(vo, so)], [vfl]); st(P, nm_)
                if nm_ == 'V': W.m += vdma
                else: lim += 24
        if n == 56: P.wait_tag('x'); W.q += xrd + xun
        P.wait_tag(f'rd{n%3}')
        if n == 23: P('s_barrier'); W.m += dma_d(20) + dma_d(21) + dma_d(22) + dma_d(23) + xdma
        if n == 46: assert not W.m; P.wait_tag(*[f'd{i}' for i in range(12, 24)]); P('s_barrier')
        def hl():
            nonlocal nh
            if nh < min(lim, n + 1 + LEAD):
                nh += 1; return ld_h(nh - 1)
            return []
        assert nh > n
        mf(0, ([rd_d(n+2, 0, 0), rd_d(n+2, 0, 1)] if n < 94 else []) + hl(), 0)
        mf(1, ([rd_d(n+2, 1, 0), rd_d(n+2, 1, 1)] if n < 94 else []) + ([] if W.m else hl()), 1)
    assert not W.m and not W.q
    st(P, 'g2loop')
    P.wait_tag('v'); P('s_barrier')
    seq = [(p, ks) for p in range(2) for ks in range(4)]
    def rd_v(i, dt, q):
        p, ks = seq[i]; r = wf + 8*(i & 1) + 4*dt + 2*q
        return f'ds_read_b64_tr_b16 {q2(r)}, v{vtv+dt} offset:{p*8192 + ks*2048 + q*1024}'
    NRM = 2048.0*320.0
    for i in range(0, 32, 4):
        for j in range(4): W.q.append(f'v_mul_f32 v{TQ+i+j}, {fl(-LOG2E)}, v{ACC+i+j}')
        for j in range(4): W.q.append(f'v_exp_f32 v{TQ+i+j}, v{TQ+i+j}')
        for j in range(4): W.q.append(f'v_fmaak_f32 v{TQ+i+j}, v{t2}, v{TQ+i+j}, {fl(NRM)}')
        for j in range(4): W.q.append(f'v_rcp_f32 v{TQ+i+j}, v{TQ+i+j}')
        for j in range(4): W.q.append(f'v_mul_f32 v{TQ+i+j}, v{TQ+i+j}, v{ACC+i+j}')
    P(f'v_mov_b32 v{t2}, {fl(NRM)}')
    for dt in range(2):
        for q in range(2): P(rd_v(0, dt, q))
    for _ in range(12): emit(W.q.pop(0))
    for i in range(8):
        p, ks = seq[i]
        for dt in range(2):
            acc = SAC + 16*dt; r = wf + 8*(i & 1) + 4*dt; mm = M1A + (16 + 16*dt if p else 0) + 4*ks
            W.mfma(f'{M32} {q16(acc)}, {q4(r)}, {q4(mm, "a")}, {"0" if i == 0 else q16(acc)}', must=[rd_v(i+1, dt, 0), rd_v(i+1, dt, 1)] if i < 7 else [], extra=24)
    W.drain()
    for c4 in range(4):
        for i in range(8*c4, 8*c4+8, 2):
            P(f'v_pk_fma_f32 {q2(XF+i)}, {q2(TQ+i)}, {q2(SAC+i)}, {q2(XF+i)}')
        for i in range(4): P(f'v_cvt_pk_bf16_f32 v{wf+4*c4+i}, v{XF+8*c4+2*i}, v{XF+8*c4+2*i+1}')
        P(f'ds_write_b128 v{vxs+c4}, {q4(wf+4*c4)}')
    P.wait(lg=0)
    for i in range(4): P(f'ds_read_b128 {q4(tmp2+4*i)}, v{vor} offset:{1024*i}')
    for i in range(4): P(f'buffer_store_dwordx4 {q4(tmp2+4*i)}, v{vxd+i}, {rs(R_D)}, s{sXo2} offen offset:{1024*i}')
    st(P, 'stored')
    if st.on: P.wait_all(); st(P, 'end'); st.flush(P, 1)
    st.finish(P)
    P('s_endpgm')
    P(f'{name}_help:'); P.vm, P.lg, P.hist = vm, lg, hist
    if opt('hpf', 0):
        P(f'v_lshrrev_b32 v{t1}, 5, v0'); P(f'v_lshlrev_b32 v{t1}, 12, v{t1}'); P(f'v_lshl_add_u32 v{t1}, v0, 7, v{t1}'); P(f's_lshl_b32 s{S_T1}, s{sC}, 12'); P(f'v_add_u32 v{xf}, s{S_T1}, v{t1}')
        P(f'v_and_b32 v{t1}, 31, v0'); P(f's_add_u32 s{S_T1}, s{S_T1}, 16384'); P(f'v_lshl_add_u32 v{xf+1}, v{t1}, 7, s{S_T1}')
        def quarter(so):
            P(f'buffer_load_dword v{tmp}, v{xf}, {rs(R_WS)}, s{so} offen sc1'); P(f'buffer_load_dword v{tmp}, v{xf+1}, {rs(R_WS)}, s{so} offen sc1')
        P(f's_lshl_b32 s{S_T3}, s{sRp}, 2'); P(f's_add_u32 s{S_T3}, s{S_T3}, s{S_WAVE}'); P(f's_mul_i32 s{S_T3}, s{S_T3}, {96*1024}'); P(f's_add_u32 s{S_T3}, s{S_T3}, {WS_H}')
        P(f's_mul_i32 s{S_T2}, s{sJ0}, {24*1024}'); P(f's_add_u32 s{sHb}, s{S_T2}, s{S_T3}')
        P(f'buffer_load_dword v{tmp}, v{xf+1}, {rs(R_WS)}, s{sHb} offen sc1')
        P(f's_add_u32 s{sHb}, s{sHb}, {48*1024}'); quarter(sHb)
        P(ld_f(vfh, sFh2))
        flag_h('hC', None)
        check(P, [ld_f(vfh, sFh2)], [vfl]); quarter(sH2)
        P(ld_f(vfh, sFh3)); check(P, [ld_f(vfh, sFh3)], [vfl]); quarter(sH3)
    else: flag_h('hC', None)
    P(f's_lshl_b32 s{S_T0}, s2, 2'); P(f's_add_u32 s{S_T0}, s{S_T0}, s{S_WAVE}'); P(f's_cmp_eq_u32 s{S_T0}, 640'); P(f's_cbranch_scc1 {name}_bump'); P('s_endpgm')
    P(f'{name}_bump:')
    P(f'v_lshrrev_b32 v{t0}, 3, v0'); P(f'v_lshlrev_b32 v{t0}, {9+FSH}, v{t0}'); P(f'v_and_b32 v{t1}, 7, v0'); P(f'v_min_u32 v{t1}, 5, v{t1}'); P(f'v_lshl_add_u32 v{t0}, v{t1}, {2+FSH}, v{t0}')
    P(f'v_lshrrev_b32 v{t1}, 5, v0'); P(f'v_lshlrev_b32 v{t1}, 7, v{t1}'); P(f'v_and_b32 v{t2}, 31, v0'); P(f'v_add_lshl_u32 v{t1}, v{t1}, v{t2}, 7')
    for i in range(4): P(f's_mov_b32 s{sB+i}, {WS_FH + (32 << FSH)*i}')
    P(f's_mov_b32 s{sWo}, {WS_FT}')
    lds_ = [f'buffer_load_dword v{xf+4+i}, v{t0}, {rs(R_WS)}, s{sB+i} offen sc1' for i in range(4)] + [f'buffer_load_dword v{xf+8}, v{t1}, {rs(R_WS)}, s{sWo} offen sc1']
    for l in lds_: P(l)
    check(P, lds_, [xf+4+i for i in range(5)], sleep=16)
    P(f's_mov_b32 s{sXo}, {WS_GEN}'); set_flag(P, t0, sXo)
    P('s_endpgm')
```

```python
from common import *
XT = 0; ZB = 40960; STG = 81920; WB = 40960; A2B = 139264; SST = 155648; ROWP = 656
sG, sP, sSig, sTb, sO1, sO2, sK0, sFs = range(S_FREE, S_FREE+8)
sW = S_FREE + 8
sMask, sXl, sG0 = S_FREE+16, S_FREE+17, S_FREE+18
sOT, sOX, sOV, sFT, sOS, sFV, sTd, sF2, sM = range(S_FREE+20, S_FREE+29)
MF = 'v_mfma_f32_16x16x32_bf16'
F1A = 0; F2A = 120; A2A = 0
WR = 128
MM = 224

def role_spec(P, st, name):
    V = Alloc(1, 124)
    t0, t1, t2, t3 = V(1, 2), V(), V(), V()
    g, n, lin, g4f = V(), V(), V(), V()
    bgq = []
    def bg(k=1):
        for _ in range(k):
            while bgq:
                op = bgq.pop(0)
                if isinstance(op, tuple): P(op[0], tag=op[1]); break
                P(op)
                if op.startswith('buffer'): break
    P(f's_sub_u32 s{S_T0}, s{S_R}, 24'); P(f's_and_b32 s{sP}, s{S_T0}, 1'); P(f's_lshr_b32 s{S_T0}, s{S_T0}, 1')
    P(f's_lshl_b32 s{sG}, s{S_XCD}, 2'); P(f's_add_u32 s{sG}, s{sG}, s{S_T0}')
    vx = V()
    P(f'v_lshrrev_b32 v{t0}, 3, v0'); P(f'v_and_b32 v{t1}, 7, v0'); P(f'v_and_b32 v{t2}, 6, v{t0}'); P(f'v_xor_b32 v{t2}, v{t2}, v{t1}')
    P(f'v_mul_u32_u24 v{vx}, 40960, v{t0}'); P(f'v_lshl_add_u32 v{vx}, v{t2}, 4, v{vx}')
    P(f's_lshl_b32 s{S_T0}, s{S_WAVE}, 1'); P(f's_add_u32 s{S_T0}, s{S_T0}, s{sP}'); P(f's_xor_b32 s{S_T1}, s{S_T0}, 1')
    P(f's_mul_i32 s{sXl}, s{S_T0}, 10240'); P(f's_mul_i32 s{sMask}, s{S_T1}, 10240')
    P(f's_lshl_b32 s{S_T0}, s{S_T0}, 8'); P(f's_add_u32 s{S_T0}, s{S_T0}, s{sG}'); P(f's_mul_i32 s{sO1}, s{S_T0}, 1280')
    P(f's_lshl_b32 s{S_T1}, s{S_T1}, 8'); P(f's_add_u32 s{S_T1}, s{S_T1}, s{sG}'); P(f's_mul_i32 s{sO2}, s{S_T1}, 1280')
    args(P)
    for hf in range(2):
        for cb in range(10):
            bgq.append(f's_add_u32 m0, s{sMask if hf else sXl}, {XT + cb*896}')
            bgq.append((f'buffer_load_dwordx4 v{vx}, {rs(R_X)}, s{sO2 if hf else sO1} offen offset:{cb*128} lds', f'x{hf}_{cb}'))
    bg(opt('sx0', 8))
    st(P, 'start')
    P('s_branch k_spec'); P.raw('SPLIT')
    P(f'v_lshrrev_b32 v{g}, 4, v0'); P(f'v_and_b32 v{n}, 15, v0'); P(f'v_lshlrev_b32 v{lin}, 4, v0')
    vrd = V(2)
    P(f'v_add_u32 v{vrd}, s{sXl}, v{lin}'); P(f'v_add_u32 v{vrd+1}, s{sMask}, v{lin}')
    P(f'v_cvt_f32_u32 v{g4f}, v{g}'); P(f'v_mul_f32 v{g4f}, 4.0, v{g4f}')
    P(f's_mul_i32 s{sSig}, s{sP}, 0x80008000')
    P(f's_mul_i32 s{sTb}, s{S_WAVE}, 5'); P(f's_lshr_b32 s{sTd}, s{sTb}, 1'); P(f's_add_u32 s{sTb}, s{sTb}, 1'); P(f's_lshr_b32 s{sTb}, s{sTb}, 1'); P(f's_sub_u32 s{sK0}, 2, s{sP}')
    P(f's_cmp_eq_u32 s{sG}, 0'); P(f's_cselect_b32 s{sFs}, 32, 64'); P(f's_cselect_b32 s{sG0}, 0xffff, 0'); P(f's_mov_b32 s{sG0+1}, 0')
    P(f's_bitcmp1_b32 s{S_WAVE}, 0'); P(f's_cselect_b64 s[{R_A}:{R_A+1}], s[{P_WI}:{P_WI+1}], s[{P_WR}:{P_WR+1}]'); P(f's_mov_b32 s{R_A+2}, {WFB}'); P(f's_mov_b32 s{R_A+3}, 0x20000')
    srd(P, R_C, P_WD, WDB)
    def gen_m():
        M = MM
        P(f'v_lshrrev_b32 v{t0}, 1, v{g}'); P(f'v_and_b32 v{t1}, 1, v{g}'); P(f'v_lshlrev_b32 v{t0}, 2, v{t0}'); P(f'v_add_lshl_u32 v{t0}, v{t0}, v{t1}, 2')
        P(f'v_cvt_f32_u32 v{t3}, v{t0}')
        P(f's_and_b32 s{S_T0}, s{S_WAVE}, 1'); P(f's_lshl_b32 s{S_T0}, s{S_T0}, 5')
        for nt in range(2):
            P(f'v_add_u32 v{t0}, s{S_T0}, v{n}')
            if nt: P(f'v_add_u32 v{t0}, 16, v{t0}')
            else: P(f'v_cmp_eq_u32 vcc, 1, v{t0}'); P(f'v_cndmask_b32 v{t0}, v{t0}, 64, vcc')
            P(f'v_and_b32 v{t1}, 1, v{t0}'); P(f'v_lshrrev_b32 v{t0}, 1, v{t0}')
            P(f'v_cvt_f32_u32 v{t1}, v{t1}'); P(f'v_cvt_f32_u32 v{t0}, v{t0}')
            P(f'v_mul_f32 v{t0}, {fl(1/64)}, v{t0}'); P(f'v_mul_f32 v{t1}, {fl(-0.25)}, v{t1}')
            P(f'v_fmac_f32 v{t1}, v{t0}, v{t3}')
            for ks in range(2):
                for j in range(8): P(f'v_fmamk_f32 v{M+16*nt+8*ks+j}, v{t0}, {fl(float(32*ks + 8*(j>>2) + (j&3)))}, v{t1}')
            for i in range(16): P(f'v_cos_f32 v{M+16*nt+i}, v{M+16*nt+i}')
    def gen_f(which, B, tks, rate):
        base = F1A if which == 1 else F2A
        dl, ph, tw = B, B+1, B+2; X = B + 4; PK = B + 28
        if which == 2:
            P(f'v_cmp_eq_u32 vcc, 3, v{g}'); P(f's_lshl_b32 s{S_T0}, s{sP}, 23'); P(f's_add_u32 s{S_T0}, s{S_T0}, 0x3f000000')
            P(f'v_mov_b32 v{t3}, s{S_T0}'); P(f'v_cndmask_b32 v{t3}, 1.0, v{t3}, vcc')
        for tk in tks:
            P(f's_add_u32 s{S_T0}, s{sTb}, {tk}'); P(f's_lshl_b32 s{S_T0}, s{S_T0}, 4'); P(f'v_add_u32 v{t0}, s{S_T0}, v{n}')
            if which == 1:
                P(f'v_lshl_add_u32 v{t0}, v{t0}, 1, s{sK0}'); P(f'v_cvt_f32_u32 v{t0}, v{t0}'); P(f'v_mul_f32 v{dl}, {fl(1/640)}, v{t0}')
                P(f'v_add_f32 v{t1}, 0.5, v{g4f}'); P(f'v_mul_f32 v{ph}, v{dl}, v{t1}')
            else:
                P(f'v_cvt_f32_u32 v{t0}, v{t0}'); P(f'v_add_f32 v{t0}, 0.5, v{t0}'); P(f'v_mul_f32 v{dl}, {fl(1/320)}, v{t0}')
                P(f'v_cvt_f32_u32 v{t1}, s{sK0}'); P(f'v_fma_f32 v{t1}, v{t1}, 0.5, v{g4f}'); P(f'v_mul_f32 v{ph}, v{dl}, v{t1}')
            P(f'v_mul_f32 v{t2}, {fl(16.0)}, v{dl}'); P(f'v_cos_f32 v{t2}, v{t2}')
            for u in range(10):
                x = X + 8*(u % 3)
                if u < 2:
                    for i in range(4): P(f'v_fmamk_f32 v{x+4+i}, v{dl}, {fl(float(16*u+i))}, v{ph}')
                    for i in range(4): P(f'v_cos_f32 v{x+i}, v{x+4+i}')
                    for i in range(4): P(f'v_sin_f32_e64 v{x+4+i}, -v{x+4+i}')
                    if u == 0: P(f'v_add_f32 v{tw}, v{t2}, v{t2}'); P(f'v_add_f32 v{tw+1}, v{t2}, v{t2}')
                else:
                    x1 = X + 8*((u-1) % 3); x2 = X + 8*((u-2) % 3)
                    for i in range(0, 8, 2): P(f'v_pk_fma_f32 {q2(x+i)}, {q2(tw)}, {q2(x1+i)}, {q2(x2+i)} neg_lo:[0,0,1] neg_hi:[0,0,1]')
                if which == 2 and u == 9:
                    P(f'v_mul_f32 v{x+3}, v{x+3}, v{t3}'); P(f'v_mul_f32 v{x+7}, v{x+7}, v{t3}')
                pk = PK + 4*(u & 1)
                for i in range(4): P(f'v_cvt_pk_bf16_f32 v{pk+i}, v{x+2*i}, v{x+2*i+1}')
                for i in range(4):
                    P(f'v_accvgpr_write_b32 a{base + (((i>>1)*3+tk)*5 + (u>>1))*4 + 2*(u&1) + (i&1)}, v{pk+i}')
                if rate and u % rate == 0: bg()
    def gen_a2(B):
        X = B; PK = B + 8; F = B + 12; O = B + 13; MK = B + 14; AD = B + 15
        P(f's_lshl_b32 s{S_T0}, s{S_WAVE}, 11'); P(f's_add_u32 s{S_T0}, s{S_T0}, {A2B}'); P(f'v_add_u32 v{AD}, s{S_T0}, v{lin}')
        P(f's_lshr_b32 s{S_T2}, s{S_WAVE}, 1'); P(f's_and_b32 s{S_T1}, s{S_WAVE}, 1'); P(f's_lshl_b32 s{S_T1}, s{S_T1}, 4')
        P(f'v_add_u32 v{t0}, s{S_T1}, v{n}')
        P(f'v_cvt_f32_u32 v{t3}, s{S_T2}'); P(f'v_mul_f32 v{t3}, {fl(0.25)}, v{t3}')
        P(f's_cmp_eq_u32 s{sG}, 0'); P(f's_cselect_b32 s{S_T3}, 0, {fl(0.25)}')
        def frag(idx, andmask):
            for j in range(8): P(f'v_fmamk_f32 v{X+j}, v{F}, {fl(float(16*(j>>2)+(j&3)))}, v{O}')
            if idx == 9: P(f'v_cndmask_b32 v{X}, v{X}, v{t1}, s[{sG0}:{sG0+1}]')
            for j in range(8): P(f'v_cos_f32 v{X+j}, v{X+j}')
            for j in range(4): P(f'v_cvt_pk_bf16_f32 v{PK+j}, v{X+2*j}, v{X+2*j+1}')
            for j in range(4): P(f'v_and_b32 v{PK+j}, {andmask}, v{PK+j}')
            P(f'ds_write_b128 v{AD}, {q4(PK)} offset:{(idx & 1)*1024 + (idx >> 3)*8192}')
            bg(2)
        P(f'v_mul_u32_u24 v{t1}, s{sFs}, v{t0}'); P(f'v_add_u32 v{t1}, s{sG}, v{t1}')
        P(f'v_cmp_eq_u32 vcc, 0, v{t1}'); P(f's_lshl_b32 s{S_T0}, s{S_T2}, 10'); P(f'v_mov_b32 v{t2}, s{S_T0}')
        P(f'v_cndmask_b32 v{t1}, v{t1}, v{t2}, vcc'); P(f'v_cndmask_b32 v{t2}, v{t3}, 0, vcc')
        P(f'v_cvt_f32_u32 v{t1}, v{t1}'); P(f'v_mul_f32 v{F}, {fl(1/2048)}, v{t1}')
        P(f'v_fma_f32 v{O}, v{F}, v{g4f}, -v{t2}')
        P(f's_cmp_eq_u32 s{sG}, 0'); P(f's_cselect_b32 s{S_T0}, 0, -1')
        P(f'v_and_b32 v{MK}, 1, v{t0}'); P(f'v_add_u32 v{MK}, -1, v{MK}')
        P(f'v_not_b32 v{t1}, v{MK}'); P(f'v_or_b32 v{MK}, s{S_T0}, v{MK}')
        frag(0, f'v{MK}')
        P(f'v_or_b32 v{MK}, s{S_T0}, v{t1}'); P(f'v_add_f32 v{O}, s{S_T3}, v{O}')
        frag(1, f'v{MK}')
        P(f'v_cvt_f32_u32 v{t0}, v{t0}'); P(f'v_mul_f32 v{t1}, 0.5, v{t0}'); P(f'v_mul_f32 v{t0}, {fl(1/2048)}, v{t0}')
        P(f'v_cvt_f32_u32 v{F}, s{sFs}'); P(f'v_mul_f32 v{F}, v{F}, v{t0}')
        P(f'v_cvt_f32_u32 v{O}, s{sG}'); P(f'v_mul_f32 v{O}, v{O}, v{t0}'); P(f'v_fmac_f32 v{O}, v{F}, v{g4f}')
        P(f'v_mul_f32 v{t3}, 4.0, v{t3}'); P(f'v_fmac_f32 v{O}, s{S_T3}, v{t3}')
        P(f's_lshl_b32 s{S_T1}, s{S_T2}, 4'); P(f's_lshl_b32 s{sM}, 0xffff, s{S_T1}'); P(f's_or_b32 s{sM}, s{sM}, s{S_T0}')
        frag(8, f's{sM}')
        P(f'v_add_f32 v{O}, {fl(-0.25)}, v{O}')
        frag(9, f's{sM}')
    GB = 84
    def gen_f2(B):
        X = B; PK = B + 8
        P(f's_lshl_b32 s{S_T0}, s{sG}, 2'); P(f's_add_u32 s{S_T0}, s{S_T0}, s{S_WAVE}')
        P(f's_mul_i32 s{S_T1}, s{sP}, 100'); P(f's_add_u32 s{S_T1}, s{S_T1}, s{S_T0}'); P(f's_lshl_b32 s{S_T1}, s{S_T1}, 10'); P(f's_add_u32 s{S_T1}, s{S_T1}, {WS_F2}')
        P(f's_cmp_lt_u32 s{S_T0}, 100'); P(f's_cselect_b32 s{sF2}, s{S_T1}, {WS_SIZE}')
        P(f's_mul_i32 s{S_T1}, s{S_T0}, 205'); P(f's_lshr_b32 s{S_T1}, s{S_T1}, 10')
        P(f's_mul_i32 s{S_T2}, s{S_T1}, 5'); P(f's_sub_u32 s{S_T0}, s{S_T0}, s{S_T2}')
        P(f's_and_b32 s{S_T2}, s{S_T1}, 1'); P(f's_mul_i32 s{S_T2}, s{S_T2}, {fl(0.25)}')
        P(f's_lshr_b32 s{S_T1}, s{S_T1}, 1'); P(f's_lshl_b32 s{S_T1}, s{S_T1}, 4')
        P(f'v_add_u32 v{t0}, s{S_T1}, v{n}'); P(f'v_cvt_f32_u32 v{t0}, v{t0}'); P(f'v_add_f32 v{t0}, 0.5, v{t0}'); P(f'v_mul_f32 v{t0}, {fl(1/320)}, v{t0}')
        P(f'v_cvt_f32_u32 v{t1}, s{sK0}'); P(f'v_fma_f32 v{t1}, v{t1}, 0.5, v{g4f}'); P(f'v_fma_f32 v{t1}, v{t0}, v{t1}, s{S_T2}')
        P(f's_mul_i32 s{S_T1}, s{S_T0}, 5'); P(f's_add_u32 s{S_T1}, s{S_T1}, 1'); P(f's_lshr_b32 s{S_T1}, s{S_T1}, 1'); P(f's_add_u32 s{S_T2}, s{S_T1}, 1')
        P(f's_cmp_eq_u32 s{S_T0}, 4'); P(f's_cselect_b32 s{S_T1}, 2, s{S_T1}'); P(f's_cselect_b32 s{S_T2}, 7, s{S_T2}')
        P(f's_lshl_b32 s{S_T1}, s{S_T1}, 4'); P(f's_lshl_b32 s{S_T2}, s{S_T2}, 4')
        P(f'v_cvt_f32_u32 v{t2}, s{S_T1}'); P(f'v_cvt_f32_u32 v{t3}, s{S_T2}'); P(f'v_fma_f32 v{X}, v{t0}, v{t2}, v{t1}'); P(f'v_fma_f32 v{X+4}, v{t0}, v{t3}, v{t1}')
        for h in range(2):
            for i in range(1, 4): P(f'v_fmamk_f32 v{X+4*h+i}, v{t0}, {fl(float(i))}, v{X+4*h}')
        for i in range(8): P(f'v_cos_f32 v{X+i}, v{X+i}')
        P(f's_lshl_b32 s{S_T1}, s{sP}, 3'); P(f's_add_u32 s{S_T1}, s{S_T1}, s{S_T0}'); P(f's_cmp_eq_u32 s{S_T1}, 3'); P(f's_cselect_b32 s{S_T1}, 3, 4')
        P(f'v_mul_f32 v{t0}, 0.5, v{X+7}'); P(f'v_cmp_eq_u32 vcc, s{S_T1}, v{g}'); P(f'v_cndmask_b32 v{X+7}, v{X+7}, v{t0}, vcc')
        for i in range(4): P(f'v_cvt_pk_bf16_f32 v{PK+i}, v{X+2*i}, v{X+2*i+1}')
    gen_m(); nonce(P); gen_f2(52)
    strd, vw, vw0, v4 = V(), V(), V(), V()
    P(f'v_lshrrev_b32 v{t0}, 3, v0'); P(f'v_and_b32 v{t1}, 7, v0'); P(f'v_mul_u32_u24 v{strd}, {ROWP}, v{t0}'); P(f'v_lshl_add_u32 v{strd}, v{t1}, 4, v{strd}')
    P(f's_mul_i32 s{S_T0}, s{S_WAVE}, {16*ROWP}'); P(f's_add_u32 s{S_T0}, s{S_T0}, {STG}'); P(f'v_add_u32 v{strd}, s{S_T0}, v{strd}')
    P(f'v_lshlrev_b32 v{v4}, 2, v0')
    P(f's_mul_i32 s{S_T0}, s{sFs}, 642')
    P(f'v_and_b32 v{t2}, 3, v{t0}'); P(f'v_lshrrev_b32 v{t3}, 5, v0'); P(f'v_lshl_add_u32 v{t2}, v{t2}, 2, v{t3}'); P(f'v_sub_u32 v{t3}, 13, v{t2}')
    P(f's_cmp_ge_u32 s{S_WAVE}, 2'); P(f's_cselect_b64 vcc, -1, 0'); P(f'v_cndmask_b32 v{t2}, v{t2}, v{t3}, vcc'); P(f'v_mul_u32_u24 v{vw}, s{S_T0}, v{t2}')
    P(f's_mul_i32 s{S_T1}, s{sG}, 640')
    P(f's_lshl_b32 s{sW+4}, s{sG}, 1'); P(f's_sub_u32 s{sW+5}, 64, s{sW+4}'); P(f's_and_b32 s{sW+5}, s{sW+5}, 63')
    P(f's_mul_i32 s{S_T2}, s{sG}, 642'); P(f's_sub_u32 s{S_T2}, {2048*642}, s{S_T2}'); P(f's_sub_u32 s{S_T2}, s{S_T2}, s{sW+5}')
    P(f's_mul_i32 s{S_T3}, s{S_T0}, 13'); P(f's_sub_u32 s{S_T2}, s{S_T2}, s{S_T3}'); P(f's_sub_u32 s{S_T3}, 0, s{S_T0}')
    P(f's_cmp_ge_u32 s{S_WAVE}, 2'); P(f's_cselect_b32 s{sW}, s{S_T2}, s{S_T1}'); P(f's_cselect_b32 s{S_T0}, s{S_T3}, s{S_T0}'); P(f's_cselect_b32 s{S_T1}, {1024*642}, 0')
    for rg, j0 in ((1, 2), (2, 16), (3, 18)): P(f's_mul_i32 s{sW+rg}, s{S_T0}, {j0}'); P(f's_add_u32 s{sW+rg}, s{sW+rg}, s{sW}')
    P(f's_cmp_eq_u32 s{sG}, 0'); P(f's_cselect_b32 s{S_T1}, s{S_T1}, 0'); P(f's_sub_u32 s{sW}, s{sW}, s{S_T1}')
    P(f'v_add_u32 v{vw0}, s{S_T1}, v{vw}'); P(f'v_cmp_gt_u32 vcc, 8, v0'); P(f'v_cndmask_b32 v{vw0}, v{vw0}, v{vw}, vcc')
    pf = 64
    P(f'v_min_u32 v{t2}, 5, v{t1}'); P(f'v_lshlrev_b32 v{t2}, 7, v{t2}')
    P(f's_cmp_eq_u32 s{sP}, 0'); P(f's_cselect_b64 vcc, -1, 0'); P(f's_cselect_b32 s{sW+6}, s{sW}, s{sW+2}'); P(f's_cselect_b32 s{sW+7}, s{sW+1}, s{sW+3}')
    P(f'v_cndmask_b32 v{pf}, v{vw}, v{vw0}, vcc'); P(f'v_add_u32 v{pf}, v{pf}, v{t2}'); P(f'v_add_u32 v{pf+1}, v{vw}, v{t2}')
    P(f'v_and_b32 v{t2}, 1, v{t0}'); P(f'v_lshlrev_b32 v{t2}, 2, v{t2}'); P(f'v_xor_b32 v{t2}, v{t2}, v{t1}')
    P(f'v_lshl_add_u32 v{vw}, v{t2}, 4, v{vw}'); P(f'v_lshl_add_u32 v{vw0}, v{t2}, 4, v{vw0}')
    P(f's_mul_i32 s{sOT}, s{S_WAVE}, {8*81920}'); P(f's_mul_i32 s{S_T0}, s{sP}, 40960'); P(f's_mul_i32 s{S_T1}, s{sG}, 640')
    P(f's_add_u32 s{sOT}, s{sOT}, s{S_T0}'); P(f's_add_u32 s{sOT}, s{sOT}, s{S_T1}'); P(f's_add_u32 s{sOT}, s{sOT}, {WS_T}')
    P(f's_mul_i32 s{sOV}, s{S_WAVE}, {8*81920}'); P(f's_add_u32 s{sOV}, s{sOV}, s{S_T0}'); P(f's_mul_i32 s{S_T0}, s{sG}, 1280')
    P(f's_add_u32 s{sOV}, s{sOV}, s{S_T0}'); P(f's_add_u32 s{sOV}, s{sOV}, {WS_V}')
    P(f's_lshl_b32 s{S_T1}, s{sG}, 1'); P(f's_add_u32 s{S_T1}, s{S_T1}, s{sP}'); P(f's_lshl_b32 s{S_T1}, s{S_T1}, 2'); P(f's_add_u32 s{S_T1}, s{S_T1}, s{S_WAVE}')
    P(f's_mul_i32 s{sOX}, s{S_T1}, 10240'); P(f's_add_u32 s{sOX}, s{sOX}, {WS_T}')
    P(f's_lshl_b32 s{S_T1}, s{sP}, 2'); P(f's_add_u32 s{S_T0}, s{S_T1}, s{S_WAVE}'); P(f's_lshl_b32 s{S_T0}, s{S_T0}, 5'); P(f's_add_u32 s{S_T0}, s{S_T0}, s{sG}'); P(f's_lshl_b32 s{S_T0}, s{S_T0}, 7')
    P(f's_add_u32 s{sOS}, s{S_T0}, {WS_FT}'); P(f's_add_u32 s{sFV}, s{S_T0}, {WS_FV}')
    P(f's_lshr_b32 s{S_T0}, s{sG}, 3'); P(f's_add_u32 s{S_T0}, s{S_T0}, s{S_T1}'); P(f's_lshl_b32 s{S_T0}, s{S_T0}, 1'); P(f's_and_b32 s{S_T2}, s{S_WAVE}, 1'); P(f's_add_u32 s{S_T0}, s{S_T0}, s{S_T2}')
    P(f's_lshl_b32 s{S_T0}, s{S_T0}, 11'); P(f's_add_u32 s{sFT}, s{S_T0}, {WS_FT}')
    mk = V.mark()
    va = V(10); stw = V(); stw2 = V(); ones = V(); vT = V(); vs = V(3); vr = V(2); sacc = V(4, 2); rec = V(4)
    P(f'v_bfe_u32 v{t0}, v0, 2, 3'); P(f'v_lshlrev_b32 v{t0}, 7, v{t0}'); P(f'v_lshrrev_b32 v{t1}, 5, v0'); P(f'v_mul_u32_u24 v{t1}, 20480, v{t1}'); P(f'v_add_u32 v{t0}, v{t0}, v{t1}')
    P(f'v_and_b32 v{t1}, 3, v0'); P(f'v_lshl_add_u32 v{t0}, v{t1}, 3, v{t0}'); P(f'v_bfe_u32 v{t1}, v0, 3, 2'); P(f'v_lshl_add_u32 v{t0}, v{t1}, 5, v{t0}')
    P(f's_lshr_b32 s{S_T0}, s{S_WAVE}, 1'); P(f's_mul_i32 s{S_T0}, s{S_T0}, 5')
    for tt in range(5):
        for mir in range(2):
            if mir: P(f's_sub_u32 s{S_T1}, {19-tt}, s{S_T0}')
            else: P(f's_add_u32 s{S_T1}, s{S_T0}, {tt}')
            P(f's_and_b32 s{S_T2}, s{S_T1}, 3'); P(f's_lshl_b32 s{S_T2}, s{S_T2}, 5')
            if mir: P(f's_or_b32 s{S_T2}, s{S_T2}, 24')
            P(f's_lshr_b32 s{S_T1}, s{S_T1}, 2'); P(f's_lshl_b32 s{S_T1}, s{S_T1}, 10')
            P(f'v_xor_b32 v{va+2*tt+mir}, s{S_T2}, v{t0}'); P(f'v_add_u32 v{va+2*tt+mir}, s{S_T1}, v{va+2*tt+mir}')
    P(f's_and_b32 s{S_T1}, s{S_WAVE}, 1'); P(f's_mul_i32 s{S_T1}, s{S_T1}, {32*ROWP}'); P(f's_add_u32 s{S_T1}, s{S_T1}, {STG}')
    P(f'v_mul_u32_u24 v{stw}, {ROWP}, v{n}'); P(f'v_lshl_add_u32 v{stw}, v{g}, 4, v{stw}'); P(f'v_add_u32 v{stw}, s{S_T1}, v{stw}')
    P(f's_lshr_b32 s{S_T0}, s{S_WAVE}, 1'); P(f's_mul_i32 s{S_T1}, s{S_T0}, {192-8}'); P(f's_add_u32 s{S_T1}, s{S_T1}, 8'); P(f's_mul_i32 s{S_T0}, s{S_T0}, {128+8}')
    P(f'v_add_u32 v{stw2}, s{S_T1}, v{stw}'); P(f'v_add_u32 v{stw}, s{S_T0}, v{stw}')
    P(f'v_mul_u32_u24 v{t0}, 81920, v{g}'); P(f'v_bfe_u32 v{t1}, v0, 3, 1'); P(f'v_mul_u32_u24 v{t1}, 20480, v{t1}'); P(f'v_and_b32 v{t2}, 7, v0')
    P(f'v_add_u32 v{t0}, v{t0}, v{t1}'); P(f'v_lshl_add_u32 v{vT}, v{t2}, 4, v{t0}')
    P(f'v_bfe_u32 v{t0}, v0, 2, 1'); P(f'v_xor_b32 v{t0}, s{sP}, v{t0}'); P(f'v_lshrrev_b32 v{t1}, 3, v0'); P(f'v_lshl_add_u32 v{t1}, v{t0}, 3, v{t1}')
    P(f's_lshl_b32 s{S_T0}, s{S_WAVE}, 4'); P(f'v_add_u32 v{t1}, s{S_T0}, v{t1}')
    P(f'v_lshlrev_b32 v{vs}, 2, v{t1}'); P(f'v_add_u32 v{vs}, {SST}, v{vs}')
    P(f'v_lshlrev_b32 v{vs+1}, 1, v{t1}'); P(f'v_add_u32 v{vs+1}, {SST+256}, v{vs+1}')
    P(f's_lshl_b32 s{S_T0}, s{sG}, 10'); P(f's_add_u32 s{S_T0}, s{S_T0}, {WS_STAT}'); P(f'v_lshl_add_u32 v{vs+2}, v{t1}, 4, s{S_T0}')
    P(f'v_lshrrev_b32 v{t0}, 1, v{g}'); P(f'v_and_b32 v{t1}, 1, v{g}'); P(f'v_lshlrev_b32 v{t0}, 2, v{t0}'); P(f'v_add_lshl_u32 v{t0}, v{t0}, v{t1}, 3')
    P(f'v_lshlrev_b32 v{t1}, 1, v{t0}'); P(f'v_add_u32 v{vr}, {SST}, v{t1}'); P(f'v_add_u32 v{vr+1}, {SST+256}, v{t0}')
    P(f'v_mov_b32 v{ones}, 0x3f803f80'); P(f'v_mov_b64 {q2(sacc)}, 0'); P(f'v_mov_b64 {q2(sacc+2)}, 0'); P(f'v_mov_b32 v{rec+3}, s{S_NONCE}')
    P(f's_sub_u32 s{S_T0}, s2, 192'); P(f's_lshl_b32 s{S_T0}, s{S_T0}, 2'); P(f's_add_u32 s{S_T0}, s{S_T0}, s{S_WAVE}')
    P(f's_mul_i32 s{S_T1}, s{S_T0}, {60*128}'); P(f'v_min_u32 v{t0}, 59, v0'); P(f'v_lshl_add_u32 v{pf+2}, v{t0}, 7, s{S_T1}')
    pfl = [f'buffer_load_dword v124, v{pf}, {rs(R_A)}, s{sW+6} offen', f'buffer_load_dword v124, v{pf+1}, {rs(R_A)}, s{sW+7} offen', f'buffer_load_dword v124, v{pf+2}, {rs(R_C)}, 0 offen']
    assert V.p <= 52, V.p
    st(P, 'genA')
    NF = opt('nf', 2)
    for tk in range(NF): gen_f(1, GB, [tk], 0 if tk < opt('nq', 1) else 1)
    bg(20)
    P(f'buffer_store_dwordx4 {q4(60)}, v{lin}, {rs(R_WS)}, s{sF2} offen sc1', tag='F2')
    for op in pfl[2:]: P(op)
    hop(P, 'spec'); P('spec_main:')
    st(P, 'genB')
    MP = 52; MS = 68; MU = 84; XF = 92; AC = 108; RR = AC; NM = XF + 8; M = MM
    blk = [(hf, cb) for hf in range(2) for cb in range(10)]
    def rd(i):
        hf, cb = blk[i]; P.wait_tag(f'x{hf}_{cb}'); P(f'ds_read_b128 {q4(XF+4*(i%4))}, v{vrd+hf} offset:{XT + cb*1024}')
    rd(0); rd(1)
    for i in range(20):
        if i + 2 < 20: rd(i+2)
        hf = blk[i][0]
        for j in range(4):
            r = XF + 4*(i % 4) + j
            P(f'v_dot2c_f32_bf16 v{sacc+2*hf}, v{r}, v{ones}'); P(f'v_dot2c_f32_bf16 v{sacc+2*hf+1}, v{r}, v{r}')
    st(P, 's1_x')
    P(f'v_and_b32 v{t0}, 4, v0'); P(f'v_cmp_eq_u32 vcc, 0, v{t0}')
    for i in range(4): P(f'v_add_f32_dpp v{sacc+i}, v{sacc+i}, v{sacc+i} row_half_mirror row_mask:0xf bank_mask:0xf')
    P(f'v_cndmask_b32 v{t1}, v{sacc+2}, v{sacc}, vcc'); P(f'v_cndmask_b32 v{t2}, v{sacc+3}, v{sacc+1}, vcc')
    for mod in ('quad_perm:[1,0,3,2]', 'quad_perm:[2,3,0,1]'):
        for r in (t1, t2): P(f'v_add_f32_dpp v{r}, v{r}, v{r} {mod} row_mask:0xf bank_mask:0xf')
    P(f'v_mul_f32 v{t1}, {fl(1/640)}, v{t1}'); P(f'v_mul_f32 v{t2}, {fl(1/640)}, v{t2}')
    P(f'v_fma_f32 v{t2}, -v{t1}, v{t1}, v{t2}'); P(f'v_cvt_pk_bf16_f32 v{rec}, -v{t1}, -v{t1}'); P(f'v_max_f32 v{t2}, 0, v{t2}')
    P(f'ds_write_b16 v{vs+1}, v{rec}')
    P(f'v_cvt_pk_bf16_f32 v{t2}, 0, v{t2}'); P(f'v_add_f32 v{t2}, {fl(1e-5)}, v{t2}')
    P(f'v_cvt_pk_bf16_f32 v{t2}, 0, v{t2}'); P(f'v_sqrt_f32 v{t2}, v{t2}')
    P(f'v_cvt_pk_bf16_f32 v{t2}, 0, v{t2}')
    P(f'v_rcp_f32 v{t3}, v{t2}'); P(f'v_mul_f32 v{rec+2}, v{t2}, v{t2}'); P(f'ds_write_b32 v{vs}, v{t3}'); P(f'v_mul_f32 v{rec+1}, {fl(-LOG2E)}, v{t3}')
    P(f's_mov_b32 exec_lo, 0x01010101'); P(f's_mov_b32 exec_hi, 0x01010101')
    P(f'buffer_store_dwordx4 {q4(rec)}, v{vs+2}, {rs(R_WS)}, 0 offen sc1', tag='stat')
    P(f's_mov_b64 exec, -1')
    P.wait(lg=0); P('s_barrier')
    for ks in range(2):
        for q in range(2): P(f'ds_read_b128 {q4(RR+8*ks+4*q)}, v{vr} offset:{(32*ks+8*q)*4}')
    for ks in range(2):
        for q in range(2): P(f'ds_read_b64 {q2(NM+4*ks+2*q)}, v{vr+1} offset:{(32*ks+8*q)*2}')
    seg = [(0, 0, 0, 0), (0, 5120, 0, 1), (1, 5120, 1, 0), (1, 0, 1, 1)]
    fr = [(tt, sg, ks) for tt in range(5) for sg in range(4) for ks in range(2)]
    def rdx(i, q):
        tt, sg, ks = fr[i]; mir, off, _, _ = seg[sg]
        return (f'ds_read_b64_tr_b16 {q2(XF+4*(i%4)+2*q)}, v{va+2*tt+mir} offset:{XT + off + (4*ks+q)*10240}', f'f{i}')
    W = Weave(P)
    for i in range(2): W.emit(rdx(i, 0)); W.emit(rdx(i, 1))
    for op in pfl[:2]: P(op)
    for i in range(0, 16, 2):
        for nt in range(2): P(f'v_pk_mul_f32 {q2(M+16*nt+i)}, {q2(M+16*nt+i)}, {q2(RR+i)}')
    for i in range(16): P(f'v_cvt_pk_bf16_f32 v{MP+i}, v{M+2*i}, v{M+2*i+1}')
    W.q = [f'v_xor_b32 v{MS+8*nt+4*ks+i}, s{sSig}, v{MP+8*nt+4*ks+i}' for ks in range(2) for nt in range(2) for i in range(4)]
    for i, (mm, ks) in enumerate([(MP, 0), (MP, 1), (MS, 0), (MS, 1)]):
        for nt in range(2): W.mfma(f'{MF} {q4(MU+4*nt)}, {q4(NM+4*ks)}, {q4(mm+8*nt+4*ks)}, {q4(MU+4*nt) if i else 0}', extra=8)
    assert not W.q
    W.emit(rdx(2, 0)); W.emit(rdx(2, 1))
    st(P, 's1_mprep')
    AC2 = M; TM = M + 16
    def epi(tt):
        ac = AC if tt % 2 == 0 else AC2; ops = []
        for nt in range(2):
            a1 = ac + 4*nt; a2 = ac + 8 + 4*nt; tm = TM + 8*nt
            for r in range(4): ops.append(f'v_add_f32 v{tm+r}, v{a1+r}, v{a2+3-r}')
            for r in range(4): ops.append(f'v_sub_f32 v{tm+4+r}, v{a1+r}, v{a2+3-r}')
            for r in range(4): ops.append(f'v_cvt_pk_bf16_f32 v{tm+r}, v{tm+2*r}, v{tm+2*r+1}')
            for ty in range(2): ops.append(f'ds_write_b64 v{stw2 if tt & 1 else stw}, {q2(tm+2*ty)} offset:{nt*16*ROWP + ty*320 + (tt>>1)*64}')
        return ops
    for i, (tt, sg, ks) in enumerate(fr):
        mir, off, acc, sig = seg[sg]; ac = (AC if tt % 2 == 0 else AC2) + 8*acc
        first = (sg in (0, 2) and ks == 0)
        if i % 8 == 0: W.drain()
        if i % 8 == 1 and tt: W.q += epi(tt-1)
        if i % 2 == 0: P.wait_tag(f'f{i+1}')
        for nt in range(2):
            W.mfma(f'{MF} {q4(ac+4*nt)}, {q4(XF+4*(i%4))}, {q4((MS if sig else MP)+8*nt+4*ks)}, {q4(MU+4*nt) if first else q4(ac+4*nt)}',
                   must=[rdx(i+3, nt)] if i + 3 < len(fr) else [], extra=opt('s1x', 6))
    W.drain()
    for op in epi(4): P(op)
    P.wait(lg=0); P.wait_tag('F2'); P('s_barrier')
    st(P, 's1_dft')
    for hf in range(2):
        for c in range(5): P(f'ds_read_b128 {q4(44+4*(5*hf+c))}, v{strd} offset:{hf*8*ROWP + c*128}')
    for hf in range(2):
        for c in range(5): P(f'buffer_store_dwordx4 {q4(44+4*(5*hf+c))}, v{vT}, {rs(R_WS)}, s{sOT} offen offset:{c*128} sc1', tag='T')
        if hf == 0: P(f's_add_u32 s{sOT}, s{sOT}, {4*81920}')
    P('s_barrier')
    st(P, 's1_stored')
    V.release(mk)
    vxm = V(2); vz = V(2); vzr = V(); va2 = V(); vy = V(2); vV = vx; vxd = vrd
    Y = V(48); XF = V(16); SBx = V(16); TM = V(16); vg = Y
    P(f's_mul_i32 s{sXl}, s{S_WAVE}, 24576')
    for rg in range(4):
        for c in range(6):
            bgq.append(f's_add_u32 m0, s{sXl}, {WB + (rg*6+c)*1024 - c*128}')
            bgq.append((f'buffer_load_dwordx4 v{vw if rg else vw0}, {rs(R_A)}, s{sW+rg} offen offset:{c*128} lds', 'W'))
    bg(opt('w0', 3))
    for i in range(0, 96, 2):
        P(f'v_mov_b64 {q2(WR+i)}, 0')
        if i % 32 == 30: bg()
    gen_a2(GB)
    P.wait_tag('T'); set_line(P, t0, v4, sOS)
    st(P, 'flagT')
    for tk in range(NF, 3): gen_f(1, GB, [tk], 1)
    bg(24)
    P(f'v_and_b32 v{t0}, 7, v0'); P(f'v_lshlrev_b32 v{t0}, 7, v{t0}'); P(f'v_bfe_u32 v{t1}, v0, 3, 1'); P(f'v_mul_u32_u24 v{t1}, 5120, v{t1}')
    P(f'v_bfe_u32 v{t2}, v0, 1, 3'); P(f'v_xor_b32 v{t2}, v{t2}, v{g}'); P(f'v_lshlrev_b32 v{t2}, 4, v{t2}'); P(f'v_add3_u32 v{vxm}, v{t0}, v{t1}, v{t2}')
    P(f'v_xor_b32 v{vxm+1}, 64, v{vxm}')
    P(f'v_add_u32 v{vzr}, {ZB}, v{lin}'); P(f'v_add_u32 v{va2}, {A2B}, v{lin}')
    P(f's_lshl_b32 s{S_T0}, s{S_WAVE}, 10'); P(f'v_add_u32 v{vz}, s{S_T0}, v{vzr}')
    P(f's_lshl_b32 s{S_T0}, s{S_WAVE}, 2'); P(f's_add_u32 s{S_T0}, s{S_T0}, 4096'); P(f'v_add_u32 v{vz+1}, s{S_T0}, v{vzr}')
    P(f'v_mul_u32_u24 v{t0}, {ROWP}, v{n}'); P(f'v_lshlrev_b32 v{t1}, 3, v{g}'); P(f's_lshl_b32 s{S_T0}, s{sTd}, 5')
    P(f's_add_u32 s{S_T1}, s{S_T0}, {STG}'); P(f'v_add3_u32 v{vy}, v{t0}, v{t1}, s{S_T1}')
    P(f's_sub_u32 s{S_T1}, {STG + 632 - 64}, s{S_T0}'); P(f'v_sub_u32 v{t0}, v{t0}, v{t1}'); P(f'v_add_u32 v{vy+1}, s{S_T1}, v{t0}')
    P(f'v_lshrrev_b32 v{t0}, 3, v0'); P(f'v_and_b32 v{t2}, 7, v0'); P(f'v_mul_u32_u24 v{vV}, 81920, v{t0}'); P(f'v_lshl_add_u32 v{vV}, v{t2}, 4, v{vV}')
    P(f'v_xor_b32 v{t2}, v{t2}, v{g}'); P(f'v_mul_u32_u24 v{t0}, 640, v{t0}'); P(f'v_lshl_add_u32 v{vxd}, v{t2}, 4, v{t0}'); P(f'v_xor_b32 v{vxd+1}, 64, v{vxd}')
    P(f's_mul_i32 s{S_T0}, s{S_WAVE}, {8*ROWP}'); P(f'v_subrev_u32 v{strd}, s{S_T0}, v{strd}')
    P(f's_mul_i32 s{sF2}, s{sP}, 10'); P(f's_add_u32 s{sF2}, s{sF2}, s{sTd}'); P(f's_mul_i32 s{sF2}, s{sF2}, 10240'); P(f's_add_u32 s{sF2}, s{sF2}, {WS_F2}')
    P(f'v_and_b32 v{t1}, 1, v{g}'); P(f'v_lshlrev_b32 v{t1}, 6, v{t1}'); P(f'v_lshl_add_u32 v{t1}, v{g}, 7, v{t1}')
    P(f's_lshl_b32 s{S_T0}, s{sTb}, 5'); P(f's_add_u32 s{S_T0}, s{S_T0}, s{sK0}'); P(f's_lshl_b32 s{S_T0}, s{S_T0}, 1')
    for sg in range(2):
        for tk in range(3):
            r = vg + 3*sg + tk
            P(f's_add_u32 s{S_T1}, s{S_T0}, s{sW+4+sg}'); P(f's_add_u32 s{S_T1}, s{S_T1}, {64*tk}'); P(f'v_lshl_add_u32 v{t0}, v{n}, 2, s{S_T1}')
            P(f'v_lshrrev_b32 v{t2}, 7, v{t0}'); P(f'v_and_b32 v{t0}, 127, v{t0}'); P(f'v_xor_b32 v{t0}, v{t0}, v{t1}'); P(f'v_lshl_add_u32 v{r}, v{t2}, 10, v{t0}')
            P(f'v_add_u32 v{r}, {WB + 49152*sg}, v{r}')
    P(f'v_lshlrev_b32 v{t2}, 7, v{n}')
    ld = f'buffer_load_dword v{t3}, v{t2}, {rs(R_WS)}, s{sFT} offen sc1'
    P(ld)
    P.wait_tag('W'); P('s_barrier')
    st(P, 'gen2')
    gl = [f'ds_read_u16_d16_hi v{WR + tk*32 + c*8 + x}, v{vg + 3*(c >> 1) + tk} offset:{(c & 1)*24576 + (x >> 1)*6144 + (x & 1)*512}' for tk in range(3) for c in range(4) for x in range(8)]
    G0 = opt('g0', 24)
    for op in gl[:G0]: P(op)
    check(P, [ld], [t3], sleep=2)
    st(P, 'Tseen')
    P(f's_mul_i32 s{S_T1}, s{S_WAVE}, 10240')
    for hf in range(2):
        for c in range(5):
            P(f's_add_u32 m0, s{S_T1}, {XT + (hf*5+c)*1024 - c*128}')
            P(f'buffer_load_dwordx4 v{vxd+hf}, {rs(R_WS)}, s{sOX} offen offset:{c*128} sc1 lds', tag='X')
        if hf == 0: P(f's_add_u32 s{sOX}, s{sOX}, 5120')
    for op in gl[G0:]: P(op)
    P.wait(lg=0); P.wait_tag('X'); P('s_barrier')
    st(P, 'mid_x')
    for k in range(30):
        W.m.append(f'buffer_load_dwordx4 {q4(F2A+4*k, "a")}, v{lin}, {rs(R_WS)}, s{sF2} offen offset:{1024*(k % 4)} sc1')
        if k % 4 == 3: W.m.append(f's_add_u32 s{sF2}, s{sF2}, 4096')
    AC = MM
    fr = [(ty, rt, ks) for ty in range(2) for rt in range(4) for ks in range(5)]
    def rdX(i):
        ty, rt, ks = fr[i]; sg = 5*ty + ks
        return (f'ds_read_b128 {q4(XF+4*(i%4))}, v{vxm+(sg&1)} offset:{XT + (10*rt + (sg>>1))*1024}', f'f{i}')
    for i in range(3): W.emit(rdX(i))
    def cvt1(ty, rt):
        ac = AC + 12*(rt & 1)
        return [f'v_cvt_pk_bf16_f32 v{Y + (tk*2+ty)*8 + 2*rt + h}, v{ac+4*tk+2*h}, v{ac+4*tk+2*h+1}' for tk in range(3) for h in range(2)]
    def rdA(k): return f'ds_read_b128 {q4(A2A+4*k, "a")}, v{va2} offset:{k*1024}'
    for i, (ty, rt, ks) in enumerate(fr):
        ac = AC + 12*(rt & 1)
        if ks == 1 and i > 1: assert not W.q; W.q += cvt1(*fr[i-5][:2])
        if i % 2 == 0: P.wait_tag(f'f{i+1}')
        for tk in range(3):
            must = []
            if tk == 0 and i + 3 < len(fr): must = [rdX(i+3)]
            if tk == 2 and 21 <= i < 37: must = [rdA(i-21)]
            W.mfma(f'{MF} {q4(ac+4*tk)}, {q4(XF+4*(i%4))}, {q4(F1A+((ty*3+tk)*5+ks)*4, "a")}, {q4(ac+4*tk) if ks else 0}', must=must, nm=1 if (tk == 1 and i % 2) else 0)
    assert not W.q
    st(P, 'mid_i')
    SA = MM; SB = XF
    T2 = [SB, SA, WR]; T3 = [SB, SA, WR + 32]
    def w(tk, c, x): return WR + tk*32 + c*8 + x
    def ii(tk):
        for ty in range(2):
            if ty == 1 and tk == 0: assert not W.q
            for ks in range(2):
                for mt in range(4):
                    ac = T2[tk] + 16*ty + 4*mt
                    W.mfma(f'{MF} {q4(ac)}, {q4(A2A+(2*mt+ks)*4, "a")}, {q4(Y+(tk*2+ty)*8+4*ks)}, {q4(ac) if ks else 0}', nm=1 if mt == 3 else 0)
    def iii(tk):
        BP = Y + tk*16
        for ty in range(2):
            for cs in range(2):
                for nt in range(4):
                    ac = T3[tk] + 16*ty + 4*nt
                    W.mfma(f'{MF} {q4(ac)}, {q4(BP+ty*8+cs*4)}, {q4(A2A+32+(2*nt+cs)*4, "a")}, {q4(ac) if cs else 0}', nm=0)
    def filt(tk):
        S = T2[tk]
        while W.q: W.emit(W.q.pop(0))
        for x in range(0, 8, 2):
            cr, ci, sr, si = S + x, S + 16 + x, S + 8 + x, S + 24 + x
            pr, pi_, nr, ni = (q2(w(tk, c, x)) for c in range(4))
            fpr, fpi, fnr, fni, gpr, gpi, gnr, gni = (q2(TM + 2*i) for i in range(8))
            N1 = 'neg_lo:[0,1] neg_hi:[0,1]'; N0 = 'neg_lo:[1,0,0] neg_hi:[1,0,0]'
            P(f'v_pk_add_f32 {fpr}, {q2(cr)}, {q2(si)}'); P(f'v_pk_add_f32 {fpi}, {q2(ci)}, {q2(sr)} {N1}')
            P(f'v_pk_add_f32 {fnr}, {q2(cr)}, {q2(si)} {N1}'); P(f'v_pk_add_f32 {fni}, {q2(ci)}, {q2(sr)}')
            P(f'v_pk_mul_f32 {gpr}, {fpr}, {pr}'); P(f'v_pk_mul_f32 {gpi}, {fpr}, {pi_}')
            P(f'v_pk_mul_f32 {gnr}, {fnr}, {nr}'); P(f'v_pk_mul_f32 {gni}, {fnr}, {ni}')
            if x == 0:
                def special(Q, back):
                    Q(f'v_mul_f32 v{t0}, v{cr}, v{w(tk,0,0)}'); Q(f'v_mul_f32 v{t1}, v{cr}, v{w(tk,1,0)}')
                    Q(f'v_mul_f32 v{t2}, v{sr}, v{w(tk,2,0)}'); Q(f'v_mul_f32 v{t3}, v{sr}, v{w(tk,3,0)}')
                    Q(f'v_fma_f32 v{t0}, -v{ci}, v{w(tk,1,0)}, v{t0}'); Q(f'v_fma_f32 v{t1}, v{ci}, v{w(tk,0,0)}, v{t1}')
                    Q(f'v_fma_f32 v{t2}, -v{si}, v{w(tk,3,0)}, v{t2}'); Q(f'v_fma_f32 v{t3}, v{si}, v{w(tk,2,0)}, v{t3}')
                special(P, None)
            P(f'v_pk_fma_f32 {gpr}, {fpi}, {pi_}, {gpr} {N0}'); P(f'v_pk_fma_f32 {gpi}, {fpi}, {pr}, {gpi}')
            P(f'v_pk_fma_f32 {gnr}, {fni}, {ni}, {gnr} {N0}'); P(f'v_pk_fma_f32 {gni}, {fni}, {nr}, {gni}')
            P(f'v_pk_add_f32 {q2(cr)}, {gpr}, {gnr}'); P(f'v_pk_add_f32 {q2(ci)}, {gpi}, {gni}')
            P(f'v_pk_add_f32 {q2(sr)}, {gni}, {gpi} {N1}'); P(f'v_pk_add_f32 {q2(si)}, {gpr}, {gnr} {N1}')
        fix = [f'v_cndmask_b32 v{r}, v{r}, v{t}, s[{sG0}:{sG0+1}]' for r, t in ((S, t0), (S+16, t1), (S+8, t2), (S+24, t3))]
        return fix + [f'v_cvt_pk_bf16_f32 v{Y + tk*16 + i}, v{S+2*i}, v{S+2*i+1}' for i in range(16)]
    def cvtz(tk):
        ops = []
        for k in range(8):
            ac = T3[tk] + 4*k; d = T3[0] + 4*k + 2 if tk == 1 else ac
            ops += [f'v_cvt_pk_bf16_f32 v{d}, v{ac}, v{ac+1}', f'v_cvt_pk_bf16_f32 v{d+1}, v{ac+2}, v{ac+3}']
            if tk == 1: ops.append(f'ds_write_b128 v{vz}, {q4(d-2)} offset:{k*5120}')
            if tk == 2: ops.append(f'ds_write_b64 v{vz+1}, {q2(ac)} offset:{k*5120}')
        return ops
    W.q = ['BREAK', 'BREAK'] + cvt1(1, 3)
    ii(0); ii(1)
    W.q = filt(0); ii(2)
    assert not W.m
    W.q = filt(1); iii(0)
    W.q = filt(2) + cvtz(0); iii(1)
    assert len(W.q) <= 16
    W.q += cvtz(1); iii(2)
    W.drain()
    P(f's_bitcmp1_b32 s{S_WAVE}, 0'); P('s_cbranch_scc1 spec_noz')
    for op in cvtz(2): P(op)
    P('spec_noz:')
    P.wait(lg=0); P('s_barrier')
    st(P, 'mid_iii')
    fr = [(nt, ty, ks) for nt in range(4) for ty in range(2) for ks in range(5)]
    def rdz(i):
        nt, ty, ks = fr[i]
        return (f'ds_read_b128 {q4(XF+4*(i%4))}, v{vzr} offset:{(ty*4+nt)*5120 + ks*1024}', f'f{i}')
    for i in range(3): W.emit(rdz(i))
    A4 = WR
    def vrd_(hf): return [f'ds_read_b128 {q4(Y+20*hf+4*c)}, v{strd} offset:{hf*32*ROWP + c*128}' for c in range(5)]
    def vst_(hf): return [(f'buffer_store_dwordx4 {q4(Y+20*hf+4*c)}, v{vV}, {rs(R_WS)}, s{sOV} offen offset:{hf*640 + c*128} sc1', 'V') for c in range(5)]
    def epi4(nt):
        ac = A4 + 24*(nt & 1); ops = []
        for td in range(3):
            e = ac + 4*td; o = ac + 12 + 4*td; tm = TM + 8*(td & 1)
            for r in range(4): ops.append(f'v_add_f32 v{tm+r}, v{e+r}, v{o+r}')
            for r in range(4): ops.append(f'v_sub_f32 v{tm+7-r}, v{e+r}, v{o+r}')
            for r in range(4): ops.append(f'v_cvt_pk_bf16_f32 v{tm+r}, v{tm+2*r}, v{tm+2*r+1}')
            ops.append(f'ds_write_b64 v{vy}, {q2(tm)} offset:{nt*16*ROWP + td*32}')
            ops.append(f'ds_write_b64 v{vy+1}, {q2(tm+2)} offset:{nt*16*ROWP + (2-td)*32}')
        return ops
    for i, (nt, ty, ks) in enumerate(fr):
        ac = A4 + 24*(nt & 1) + 12*ty
        if i % 10 == 0: W.drain()
        if i % 10 == 1 and nt: W.q += epi4(nt-1)
        if i == 30 and opt('vsplit', 1): P.wait(lg=0); P('s_barrier'); W.m = vrd_(0) + vst_(0)
        if i % 2 == 0: P.wait_tag(f'f{i+1}')
        for td in range(3):
            W.mfma(f'{MF} {q4(ac+4*td)}, {q4(F2A+((td*2+ty)*5+ks)*4, "a")}, {q4(XF+4*(i%4))}, {q4(ac+4*td) if ks else 0}',
                   must=[rdz(i+3)] if (td == 0 and i + 3 < len(fr)) else [], nm=1 if td == 1 else 0)
    W.drain()
    for op in epi4(3): P(op)
    P.wait(lg=0); P('s_barrier')
    st(P, 'mid_iv')
    for op in (vrd_(1) + vst_(1) if opt('vsplit', 1) else vrd_(0) + vrd_(1) + vst_(0) + vst_(1)): W.emit(op)
    st(P, 'mid_stored')
    P.wait_tag('V'); set_line(P, t0, v4, sFV)
    if st.on: P.wait_all(); st(P, 'end'); st.flush(P, 1)
    st.finish(P)
    P('s_endpgm')
```

```python
from prog import *
import os
OPT = dict(kv.split('=') if '=' in kv else (kv, '1') for kv in os.environ.get('OPT', '').split(',') if kv)
def opt(k, d): return type(d)(OPT.get(k, d))
WS_GEN = 0x0
WS_STAT = 0x10000
FSH = opt('fsh', 2)
WS_FT = 0x20000
WS_FV = 0x30000
WS_FH = 0x40000
WS_F2 = 0x80000
WS_T = 0x100000
WS_V = 0x400000
WS_H = 0x700000
WS_STAMP = 0xD00000
WS_SIZE = 0xE00000
XB = 2048*1280; WGB = 640*3072; WDB = 1536*1280; WFB = 2048*642
S_WAVE = 3
P_X, P_WR, P_WI, P_WG, P_WU, P_WD, P_OUT, P_DBG, P_WS = 4, 6, 8, 12, 14, 16, 18, 20, 22
R_X, R_WS, R_A, R_B, R_C, R_D = 24, 28, 32, 36, 40, 44
S_XCD, S_R = 48, 49
S_T0, S_T1, S_T2, S_T3 = 50, 51, 52, 53
S_NONCE, S_SPIN = 54, 55
S_FREE = 56
S_STAMP = 88
LOG2E = 1.4426950408889634
SPIN_MAX = 1 << 16
import struct
def f2u(x): return struct.unpack('<I', struct.pack('<f', x))[0]
def fl(x): return hex(f2u(x))
def q4(r, k='v'): return f'{k}[{r}:{r+3}]'
def q2(r, k='v'): return f'{k}[{r}:{r+1}]'
def rs(r): return f's[{r}:{r+3}]'

def srd(P, r, ptr, nbytes, back=0):
    if back:
        P(f's_sub_u32 s{r}, s{ptr}, {back}'); P(f's_subb_u32 s{r+1}, s{ptr+1}, 0')
    else:
        P(f's_mov_b32 s{r}, s{ptr}'); P(f's_mov_b32 s{r+1}, s{ptr+1}')
    P(f's_mov_b32 s{r+2}, {nbytes+back}'); P(f's_mov_b32 s{r+3}, 0x20000')

def entry(P, name, nwg=256, code_end=None):
    P(f's_cmp_lt_u32 s2, {nwg}'); P(f's_cbranch_scc1 {name}_go'); P('s_endpgm'); P(f'{name}_go:')
    if opt('entry', 0):
        P('s_memrealtime s[90:91]'); P('s_memtime s[92:93]')
    P('s_load_dwordx16 s[4:19], s[0:1], 0'); P('s_load_dwordx4 s[20:23], s[0:1], 64')
    P(f's_and_b32 s{S_XCD}, s2, 7'); P(f's_lshr_b32 s{S_R}, s2, 3')
    P('v_lshrrev_b32 v1, 6, v0'); P(f'v_readfirstlane_b32 s{S_WAVE}, v1')
    P('v_and_b32 v0, 63, v0')
    if code_end and opt('cpf', 1):
        P('s_getpc_b64 s[60:61]'); P(f'{name}_pc:')
        P(f's_and_b32 s{S_T0}, s{S_R}, 7'); P(f's_lshl_b32 s{S_T0}, s{S_T0}, 2'); P(f's_add_u32 s{S_T0}, s{S_T0}, s{S_WAVE}'); P(f's_lshl_b32 s{S_T0}, s{S_T0}, 11')
        P(f'v_lshl_add_u32 v2, v0, 5, s{S_T0}'); P(f'v_min_u32 v2, {code_end}-{name}_pc-4, v2')
        P('v_mov_b32 v3, s61'); P('v_add_co_u32 v2, vcc, s60, v2'); P('v_addc_co_u32 v3, vcc, 0, v3, vcc')
        P('global_load_dword v125, v[2:3], off')

def args(P, fused=True):
    P.wait(lg=0)
    if fused: P(f's_load_dword s{S_NONCE}, s[{P_WS}:{P_WS+1}], {WS_GEN}')
    srd(P, R_X, P_X, XB); srd(P, R_WS, P_WS, WS_SIZE)
def prologue(P, name, nwg=256):
    entry(P, name, nwg); args(P, False)

def nonce(P):
    P.wait(lg=0)
    P(f's_mul_i32 s{S_NONCE}, s{S_NONCE}, 0x9E3779B1'); P(f's_add_u32 s{S_NONCE}, s{S_NONCE}, 0x7F4A7C15')

def set_flag(P, vz, soff):
    P(f'v_mov_b32 v{vz}, s{S_NONCE}')
    P('s_mov_b64 exec, 1')
    P(f'buffer_store_dword v{vz}, off, {rs(R_WS)}, s{soff} sc1', tag='flag')
    P('s_mov_b64 exec, -1')

def set_line(P, vz, v4, soff):
    P(f'v_mov_b32 v{vz}, s{S_NONCE}')
    P('s_mov_b32 exec_hi, 0')
    P(f'buffer_store_dword v{vz}, v{v4}, {rs(R_WS)}, s{soff} offen sc1', tag='flag')
    P('s_mov_b32 exec_hi, -1')

def out_of_line(P, branch, body):
    slow = P.label('slow'); back = P.label('back')
    P(f'{branch} {slow}')
    Q = Prog(); Q.vm, Q.lg, Q.hist = list(P.vm), list(P.lg), list(P.hist); Q.nlab = P.nlab
    Q(f'{slow}:'); body(Q, back); Q('s_nop 4'); Q(f's_branch {back}')
    P.nlab = Q.nlab
    if not hasattr(P, 'tail'): P.tail = []
    P.tail += Q.out
    P(f'{back}:')
def flush_tail(P):
    P.out += getattr(P, 'tail', []); P.tail = []

def check(P, loads, regs, sleep=4):
    def cmp(P):
        if len(regs) == 1: P(f'v_cmp_ne_u32 vcc, s{S_NONCE}, v{regs[0]}'); return
        a = regs[-1]; P(f'v_xor_b32 v{a}, s{S_NONCE}, v{a}')
        for r in regs[:-1]: P(f'v_bitop3_b32 v{a}, v{r}, s{S_NONCE}, v{a} bitop3:0xbe')
        P(f'v_cmp_ne_u32 vcc, 0, v{a}')
    def body(Q, back):
        rt = Q.label('rt')
        Q(f's_mov_b32 s{S_SPIN}, 0'); Q(f'{rt}:')
        for l in loads: Q(l)
        Q.wait(vm=0); cmp(Q); Q(f's_cbranch_vccz {back}')
        if sleep: Q(f's_sleep {sleep}')
        Q(f's_add_u32 s{S_SPIN}, s{S_SPIN}, 1'); Q(f's_cmp_lt_u32 s{S_SPIN}, {SPIN_MAX}'); Q(f's_cbranch_scc1 {rt}')
    cmp(P); out_of_line(P, 's_cbranch_vccnz', body)

class Stamper:
    def __init__(self, on, vreg): self.on = on; self.v = vreg; self.n = 0; self.names = []
    def __call__(self, P, name):
        if not self.on: return
        if self.n == 0 and opt('entry', 0):
            P(f'v_writelane_b32 v{self.v}, s90, 0'); P(f'v_writelane_b32 v{self.v}, s92, 32'); self.names.append('entry'); self.n = 1
        if len(P.lazy) >= 4: P.wait(lg=0)
        r = 94 + 4*(self.n & 1)
        P(f's_memrealtime s[{r}:{r+1}]'); P(f's_memtime s[{r+2}:{r+3}]')
        P.lazy += [f'v_writelane_b32 v{self.v}, s{r}, {self.n}', f'v_writelane_b32 v{self.v}, s{r+2}, {self.n+32}']
        self.names.append(name); self.n += 1
    def finish(self, P): pass
    def flush(self, P, vtmp, base=0):
        if not self.on: return
        P.wait(lg=0)
        P(f's_lshl_b32 s{S_STAMP+2}, s2, 2'); P(f's_add_u32 s{S_STAMP+2}, s{S_STAMP+2}, s{S_WAVE}')
        P(f's_lshl_b32 s{S_STAMP+2}, s{S_STAMP+2}, 8'); P(f's_add_u32 s{S_STAMP+2}, s{S_STAMP+2}, {WS_STAMP+base}')
        P(f'v_lshlrev_b32 v{vtmp}, 2, v0')
        P(f'buffer_store_dword v{self.v}, v{vtmp}, s[{R_WS}:{R_WS+3}], s{S_STAMP+2} offen')

def op_text(op): return op[0] if isinstance(op, tuple) else op
def op_cost(op):
    if callable(op): return 4
    mn = op_text(op).split()[0]
    if mn.startswith('s_'): return 4*len(op_text(op).strip().split('\n'))
    if mn.startswith('ds_write_b128'): return 16
    if mn.startswith('ds_write'): return 12
    if mn.startswith('ds_') or mn.startswith('buffer') or mn.replace('_e64', '') in TRANS: return 8
    if mn.startswith('v_mfma'): return 32 if '32x32' in mn else 16
    return 4
def is_valu(op): return (not callable(op)) and op_text(op).startswith('v_')
class Weave:
    def __init__(self, P): self.P = P; self.q = []; self.m = []; self.debt = 0
    def emit(self, op):
        P = self.P; n0 = len(P.out)
        if callable(op): op()
        elif isinstance(op, tuple): P(op[0], tag=op[1])
        else: P(op)
        if callable(op) or op_text(op).startswith('s_'): return 4*(len(P.out) - n0)
        return op_cost(op) + 4*max(0, len(P.out) - n0 - 1)
    def mfma(self, text, must=(), nm=1, extra=0):
        c = self.emit(text); per = op_cost(text)
        left = per - 4 - (c - per) + extra - self.debt; first = True
        for op in must: left -= self.emit(op); first = False
        k = 0
        while self.m:
            sc = op_text(self.m[0]).startswith('s_')
            if sc and left < op_cost(self.m[0]) and k >= nm: break
            if not sc and k >= nm: break
            op = self.m.pop(0); left -= self.emit(op); first = False
            if not sc: k += 1
        while self.q:
            if self.q[0] == 'BREAK': self.q.pop(0); break
            pen = 4 if (first and is_valu(self.q[0])) else 0
            cst = op_cost(self.q[0])
            if cst >= 16 and op_text(self.q[0]).startswith('v_mfma'):
                self.emit(self.q.pop(0)); left = cst - 4 + extra; first = True; continue
            if left < min(cst, 8) + pen: break
            left -= self.emit(self.q.pop(0)) + pen; first = False
        self.debt = 0
    def drain(self):
        while self.m: self.emit(self.m.pop(0))
        while self.q: self.emit(self.q.pop(0))

def hop(P, role):
    if not opt('hop', 1): return
    P('s_mov_b64 exec, 0')
    for w in range(1, 4): P(f's_cmp_eq_u32 s{S_WAVE}, {w}'); P(f's_cbranch_scc1 {role}_pg{w}')
    P(f's_branch {role}_pg0'); P(f'{role}_ret:'); P('s_mov_b64 exec, -1')

class Probe:
    def __init__(self, role): self.on = False; self.names = []; r, _, self.ev = opt('probe', ':').partition(':'); self.act = (r == role); self.hit = False
    def __call__(self, P, name):
        if self.act and name == self.ev: P('s_memrealtime s[94:95]'); self.hit = True
    def finish(self, P):
        if not self.act: return
        if self.ev == 'entry': P('s_mov_b32 s94, s90')
        elif self.ev == 'end': P.wait_all(); P('s_memrealtime s[94:95]')
        else: assert self.hit
        P.wait_all(); l = P.label('pr'); d = P.label('pd')
        P('s_mov_b32 s98, 0'); P(f'{l}:'); P('s_sleep 1'); P('s_memrealtime s[96:97]'); P.wait(lg=0); P('s_sub_u32 s96, s96, s94')
        P('s_add_u32 s98, s98, 1'); P('s_cmp_gt_u32 s98, 20000'); P(f's_cbranch_scc1 {d}'); P('s_cmp_lt_u32 s96, 3000'); P(f's_cbranch_scc1 {l}'); P(f'{d}:')
```

```python
from asmlib import *
def gen(name, shape, nm, fill):
    A = Asm()
    A('s_load_dwordx2 s[6:7], s[0:1], 72')
    A('s_cmp_ge_u32 s2, 256'); A(f's_cbranch_scc1 {name}_end')
    A('v_lshrrev_b32 v1, 6, v0'); A('s_nop 0'); A('v_readfirstlane_b32 s3, v1')
    A('v_and_b32 v2, 63, v0'); A('v_lshlrev_b32 v3, 4, v2')
    A('s_waitcnt lgkmcnt(0)')
    A('s_mov_b32 s12, s6'); A('s_mov_b32 s13, s7'); A('s_mov_b32 s14, 0x100000'); A('s_mov_b32 s15, 0x20000')
    for i in range(8, 128): A(f'v_mov_b32 v{i}, 0')
    A('s_mov_b32 s16, 0'); A('s_barrier'); A('s_memtime s[18:19]'); A('s_waitcnt lgkmcnt(0)')
    A(f'{name}_loop:')
    k = 0
    for it in range(8):
        for m in range(nm):
            t = (it*nm+m) % 4
            if shape == 16: A(f'v_mfma_f32_16x16x32_bf16 v[{64+4*t}:{67+4*t}], v[8:11], v[12:15], v[{64+4*t}:{67+4*t}]')
            else: A(f'v_mfma_f32_32x32x16_bf16 v[{64+16*t}:{79+16*t}], v[8:11], v[12:15], v[{64+16*t}:{79+16*t}]')
        for f in fill:
            r = 20 + 2*(k % 16); k += 1
            if f == 'K': A(f'v_mfma_f32_16x16x16_bf16 v[{96+4*(k%4)}:{99+4*(k%4)}], v[8:9], v[12:13], v[{96+4*(k%4)}:{99+4*(k%4)}]')
            if f == 'L': A(f'v_mfma_f32_16x16x32_bf16 v[{96+4*(k%4)}:{99+4*(k%4)}], v[8:11], v[12:15], v[{96+4*(k%4)}:{99+4*(k%4)}]')
            if f == 'P': A(f'v_pk_fma_f32 v[{r}:{r+1}], v[16:17], v[18:19], v[{r}:{r+1}]')
            if f == 'A': A(f'v_pk_add_f32 v[{r}:{r+1}], v[16:17], v[{r}:{r+1}]')
            if f == 'M': A(f'v_pk_mul_f32 v[{r}:{r+1}], v[16:17], v[{r}:{r+1}]')
            if f == 'f': A(f'v_fma_f32 v{r}, v16, v18, v{r}')
            if f == 'a': A(f'v_add_f32 v{r}, v16, v{r}')
            if f == 'c': A(f'v_cvt_pk_bf16_f32 v{r}, v16, v18')
            if f == 'e': A(f'v_exp_f32 v{r}, v16')
            if f == 'w': A(f'ds_write_b64 v3, v[{r}:{r+1}]')
            if f == 'r': A(f'ds_read_b128 v[{52}:{55}], v3')
            if f == 's': A(f's_add_u32 s30, s30, 1')
            if f == 'n': A(f's_waitcnt lgkmcnt(15)')
            if f == 'v': A(f'v_mov_b64 v[{r}:{r+1}], 0')
            if f == 'g': A(f'v_accvgpr_write_b32 a{r}, v16')
    A('s_add_u32 s16, s16, 1'); A(f's_cmp_lt_u32 s16, 100'); A(f's_cbranch_scc1 {name}_loop')
    A('s_waitcnt vmcnt(0) lgkmcnt(0)')
    A('s_memtime s[24:25]'); A('s_waitcnt lgkmcnt(0)'); A('s_sub_u32 s24, s24, s18'); A('v_mov_b32 v5, s24')
    A('s_lshl_b32 s26, s2, 3'); A('s_add_u32 s26, s26, s3'); A('s_lshl_b32 s26, s26, 2'); A('v_mov_b32 v6, s26')
    A('buffer_store_dword v5, v6, s[12:15], 0 offen')
    A(f'{name}_end:'); A('s_endpgm')
    return kernel_text(name, A.text(), vgpr=128, agpr=128)
cfgs=[]
def add(s,nm,f):
    n=f'k_s{s}_m{nm}_{f}_kernel'; cfgs.append((n,gen(n,s,nm,f),256))
for f in ('KKKK','LLLL'): add(16,0,f)
for f in ('K','L','KK','fKf','fLf','ffKff','ffLff','eKe','eLe'): add(16,1,f)
for f in ('K','L'): add(16,3,f)
t = file_text([(n,256,b,65536) for n,_,b in cfgs], [k for _,k,_ in cfgs])
open('mb18.s','w').write(t); assemble('mb18.s','mb18.co')
print(len(cfgs))
```
